```python
import torch

def _softmax(x, axis=-1):
    return torch.softmax(x, dim=axis)
def _gelu(x):
    return torch.nn.functional.gelu(x, approximate="tanh")
def _silu(x):
    return torch.nn.functional.silu(x)
def _sigmoid(x):
    return torch.sigmoid(x)
def _layernorm(x, axis=-1, eps=1e-5):
    m = x.mean(dim=axis, keepdim=True)
    v = x.var(dim=axis, keepdim=True, unbiased=False)
    return (x - m) / torch.sqrt(v + eps)
def _scatter_add(tgt, idx, src, axis=0):
    return tgt.clone().index_add_(axis, idx, src)
def _segment_sum(src, seg, n):
    out = torch.zeros((n,) + src.shape[1:], dtype=src.dtype)
    return out.index_add_(0, seg, src)
def _pad(x, pw):
    flat = tuple(v for pair in reversed(pw) for v in pair)
    return torch.nn.functional.pad(x, flat)

kernel_name = 'gated_mix__linear_kernel_hedgehog__glu_gated_geglu__prompt'

def setup_inputs():

    _w = (lambda a: (lambda t: t.to(torch.bfloat16) if t.is_floating_point() else t)(torch.as_tensor(a)))
    def _A_setup():
        B, S, D, H = 1, 2048, 512, 32
        Dh = D // H
        return {
            "x": _w((lambda *s: torch.randn(*s, dtype=torch.bfloat16) * 0.05)(B, S, D)),
            "wqkv": _w((lambda *s: torch.randn(*s, dtype=torch.bfloat16) * 0.8)(D, 3 * D)),
            "w_phi": _w((lambda *s: torch.randn(*s, dtype=torch.bfloat16) * 0.8)(H, Dh, Dh) * (Dh ** -0.5)),
            "wo": _w((lambda *s: torch.randn(*s, dtype=torch.bfloat16) * 0.05)(D, D)),
        }
    _A_in = _A_setup()

    def _B_setup():
        B, S, Dm, Df = 1, 2048, 512, 1792
        return {
            "x": _w((lambda *s: torch.randn(*s, dtype=torch.bfloat16) * 0.05)(B, S, Dm)),
            "w_gate": _w((lambda *s: torch.randn(*s, dtype=torch.bfloat16) * 1.6)(Dm, Df) * (Dm ** -0.5)),
            "w_up": _w((lambda *s: torch.randn(*s, dtype=torch.bfloat16) * 1.6)(Dm, Df) * (Dm ** -0.5)),
            "w_down": _w((lambda *s: torch.randn(*s, dtype=torch.bfloat16) * 1.6)(Df, Dm) * (Df ** -0.5)),
        }
    _B_in = _B_setup()

    return {
        "A_x": _A_in["x"],
        "A_wqkv": _A_in["wqkv"],
        "A_w_phi": _A_in["w_phi"],
        "A_wo": _A_in["wo"],
        "B_x": _B_in["x"],
        "B_w_gate": _B_in["w_gate"],
        "B_w_up": _B_in["w_up"],
        "B_w_down": _B_in["w_down"],
        "gate_w": _w((lambda *s: torch.randn(*s, dtype=torch.bfloat16) * 0.05)(512) * 16.0),
    }

def reference(A_x, A_wqkv, A_w_phi, A_wo, B_x, B_w_gate, B_w_up, B_w_down, gate_w):
    def _A_ref(x, wqkv, w_phi, wo):
        B, S, D = x.shape
        H = 32; Dh = D // H
        qkv = (lambda x, *d: x.permute(*d))((x @ wqkv).reshape(B, S, 3, H, Dh), 2, 0, 3, 1, 4)
        q, k, v = qkv[0], qkv[1], qkv[2]
        pq = torch.einsum("bhsd,hdf->bhsf", q, w_phi)
        pk = torch.einsum("bhsd,hdf->bhsf", k, w_phi)
        phi_q = torch.concatenate([_softmax(pq, axis=-1), _softmax(-pq, axis=-1)], axis=-1)
        phi_k = torch.concatenate([_softmax(pk, axis=-1), _softmax(-pk, axis=-1)], axis=-1)
        kv = torch.einsum("bhsf,bhsd->bhfd", phi_k, v)
        z  = torch.einsum("bhsf->bhf", phi_k)
        num = torch.einsum("bhqf,bhfd->bhqd", phi_q, kv)
        den = torch.einsum("bhqf,bhf->bhq", phi_q, z)[..., None] + 1e-6
        o = num / den
        return (lambda x, *d: x.permute(*d))(o, 0, 2, 1, 3).reshape(B, S, D) @ wo

    def _B_ref(x, w_gate, w_up, w_down):
        g = torch.einsum("bsd,df->bsf", x, w_gate)
        u = torch.einsum("bsd,df->bsf", x, w_up)
        h = _gelu(g) * u
        return torch.einsum("bsf,fd->bsd", h, w_down)

    x = A_x
    g = _sigmoid((x * gate_w).sum(-1, keepdims=True))
    a = _A_ref(x, A_wqkv, A_w_phi, A_wo)
    b = _B_ref(x, B_w_gate, B_w_up, B_w_down)
    return g * a + (1 - g) * b
```

```python
import re

TRANS = ("v_exp_f32", "v_rcp_f32", "v_log_f32", "v_rsq_f32", "v_sqrt_f32")
_REG = re.compile(r"^(-|\|)?(abs\()?([vas])(\d+|\[(\d+):(\d+)\])\)?\|?$")


def regs_of(tok):
    tok = tok.strip()
    if tok in ("vcc", "exec", "m0", "scc"):
        return [tok]
    if tok in ("vcc_lo", "vcc_hi"):
        return ["vcc"]
    if tok in ("exec_lo", "exec_hi"):
        return ["exec"]
    m = _REG.match(tok)
    if not m:
        return []
    k = m.group(3)
    if m.group(5) is not None:
        return [f"{k}{i}" for i in range(int(m.group(5)), int(m.group(6)) + 1)]
    return [f"{k}{int(m.group(4))}"]


class Ins:
    def __init__(self, text, extra_reads=(), cost=None, tag=None, glue=False):
        self.text = text.strip()
        self.tag = tag
        self.glue = glue
        parts = self.text.split(None, 1)
        op = parts[0]
        self.op = op
        rest = parts[1] if len(parts) > 1 else ""
        ops = [o.strip() for o in rest.split(",")] if rest else []
        mods = []
        if ops:
            last = ops[-1].split()
            ops[-1] = last[0] if last else ""
            mods = last[1:]
        self.ops, self.mods = ops, mods
        R = [regs_of(o) for o in ops]
        flat = lambda l: [x for y in l for x in y]
        rd, wr = [], []
        self.passes = 0
        self.srcc = []
        self.srcab = []
        self.store_data = []
        self.is_dma = False
        self.is_load = False
        if op.startswith("v_mfma"):
            self.kind = "mfma"
            self.passes = 8 if "32x32" in op else 4
            wr = R[0]
            self.srcab = R[1] + R[2]
            self.srcc = R[3]
            rd = self.srcab + self.srcc
        elif op.startswith("ds_"):
            self.kind = "ds"
            if op.startswith("ds_read"):
                wr, rd = R[0], flat(R[1:])
                self.is_load = True
            else:
                rd = flat(R)
                if "b128" in op or "b96" in op:
                    self.store_data = flat(R[1:])
        elif op.startswith("buffer_") or op.startswith("global_"):
            self.kind = "vmem"
            if "lds" in mods or "_lds_" in op:
                rd = flat(R) + ["m0"]
                self.is_dma = True
            elif "_load_" in op:
                wr, rd = R[0], flat(R[1:])
                self.is_load = True
            else:
                rd = flat(R)
                if "x4" in op or "x3" in op:
                    self.store_data = R[0] if op.startswith("buffer_") else R[1]
        elif op.startswith("v_"):
            base = op.replace("_e32", "").replace("_e64", "").replace("_dpp", "")
            self.kind = "trans" if base in TRANS else "valu"
            if base.startswith("v_permlane") and "swap" in base:
                wr = R[0] + R[1]
                rd = R[0] + R[1]
            elif base.startswith("v_add_co") or base.startswith("v_sub_co") or base.startswith("v_addc_co"):
                wr = R[0] + R[1]
                rd = flat(R[2:])
            elif base == "v_nop":
                pass
            else:
                wr, rd = R[0], flat(R[1:])
                if base.startswith("v_fmac") or base.startswith("v_dot2c") or base.startswith("v_writelane"):
                    rd = rd + R[0]
            self.is_dpp = any(m.startswith("row_") or m.startswith("quad_perm") for m in mods)
        elif op.startswith("s_load") or op in ("s_memtime", "s_memrealtime"):
            self.kind = "smem"
            wr, rd = R[0], flat(R[1:])
        elif op.startswith("s_"):
            self.kind = "salu"
            if op.startswith("s_cmp") or op.startswith("s_bitcmp"):
                rd, wr = flat(R), ["scc"]
            elif op.startswith("s_cbranch") or op in ("s_branch", "s_barrier", "s_nop", "s_waitcnt", "s_sleep", "s_setprio", "s_endpgm"):
                pass
            else:
                wr, rd = R[0], flat(R[1:])
                if "saveexec" in op:
                    wr = wr + ["exec"]
                    rd = rd + ["exec"]
        else:
            self.kind = "misc"
        self.reads = set(rd) | set(extra_reads)
        self.writes = set(wr)
        if cost is None:
            cost = {"mfma": self.passes * 4, "trans": 8, "misc": 0}.get(self.kind, 4)
        self.cost = cost

    def __repr__(self):
        return self.text


class WaitVM:
    kind = "pseudo"; cost = 4; glue = False
    def __init__(self, *toks, glue=False):
        self.toks = toks; self.glue = glue


class WaitLDS:
    kind = "pseudo"; cost = 4; glue = False
    def __init__(self, *toks, glue=False):
        self.toks = toks; self.glue = glue


class Raw:
    kind = "raw"; glue = False
    def __init__(self, text, states=0, cost=0, glue=False):
        self.text = text; self.states = states; self.cost = cost; self.glue = glue


class Hold:
    kind = "hold"; cost = 0; glue = False
    def __init__(self, label):
        self.label = label


class Mark:
    kind = "mark"; cost = 0; glue = False
    def __init__(self, label):
        self.label = label


def is_vreg(r):
    return r[0] in "va" and r != "vcc"


def is_sreg(r):
    return r == "vcc" or (r[0] == "s" and r != "scc")


def hazard_need(prev, cur):
    need = 0
    pk, ck = prev.kind, cur.kind
    pvalu = pk in ("valu", "trans")
    cvalu = ck in ("valu", "trans")
    if pvalu:
        w = {r for r in prev.writes if is_vreg(r)}
        ws = {r for r in prev.writes if is_sreg(r)}
        if ck == "mfma" and w & cur.reads:
            need = max(need, 2)
        if cvalu and w & cur.reads:
            if pk == "trans":
                need = max(need, 1)
            if cur.op.startswith("v_permlane") or cur.is_dpp:
                need = max(need, 2)
            if cur.op.startswith("v_readfirstlane") or cur.op.startswith("v_readlane"):
                need = max(need, 1)
        if cvalu and ws & cur.reads:
            need = max(need, 4 if "lane" in cur.op else 2)
        if ck == "vmem" and ws & cur.reads:
            need = max(need, 5)
    if pk == "mfma":
        D = prev.writes
        big = 12 if prev.passes == 8 else 8
        if ck == "mfma":
            if D & set(cur.srcab):
                need = max(need, big)
            if D & set(cur.srcc):
                if not (set(cur.srcc) == D and cur.passes == prev.passes):
                    need = max(need, big - 2)
            elif D & cur.writes:
                need = max(need, big)
        elif cvalu or ck in ("vmem", "ds"):
            if D & (cur.reads | cur.writes):
                need = max(need, big)
        if cvalu and set(prev.srcc) & cur.writes:
            need = max(need, 7 if prev.passes == 8 else 3)
    if pk == "salu" and "m0" in prev.writes and ck == "vmem" and cur.is_dma:
        need = max(need, 1)
    if pk in ("vmem", "ds") and prev.store_data and (cvalu or ck == "mfma") and set(prev.store_data) & cur.writes:
        need = max(need, 2)
    return need


class Emitter:
    def __init__(self):
        self.lines = []
        self.hist = []
        self.lds = []
        self.vm = []
        self.smem = False
        self.smem_regs = set()
        self.stats = {"nop": 0, "wait": 0, "n": 0, "cyc": 0}

    def fork(self):
        e = Emitter()
        e.hist = list(self.hist); e.lds = list(self.lds); e.vm = list(self.vm)
        e.smem = self.smem; e.smem_regs = set(self.smem_regs)
        return e

    def _push(self, ins, states=1):
        self.hist.append((ins, states))
        if len(self.hist) > 24:
            self.hist.pop(0)

    def _wait(self, nl=None, nv=None):
        parts = []
        if nv is not None:
            nv = min(nv, 63)
            if nv < len(self.vm):
                parts.append(f"vmcnt({nv})")
                self.vm = self.vm[len(self.vm) - nv:] if nv else []
        if nl is not None:
            nl = min(nl, 15)
            if self.smem:
                nl = 0
            if nl < len(self.lds) or self.smem:
                parts.append(f"lgkmcnt({nl})")
                self.lds = self.lds[len(self.lds) - nl:] if nl else []
                if nl == 0:
                    self.smem = False; self.smem_regs = set()
        if parts:
            t = "s_waitcnt " + " ".join(parts)
            self.lines.append("  " + t)
            self._push(Ins(t))
            self.stats["wait"] += 1

    def emit(self, it):
        if isinstance(it, (list, tuple)):
            for x in it:
                self.emit(x)
            return
        if isinstance(it, str):
            for l in it.split("\n"):
                l = l.strip()
                if l:
                    self.emit(Raw(l) if l.endswith(":") or l.startswith(";") or l.startswith(".") else Ins(l))
            return
        if isinstance(it, (Mark, Hold)):
            return
        if isinstance(it, Raw):
            self.lines.append(it.text)
            if it.states:
                self._push(Ins("s_nop 0"), it.states)
            return
        if isinstance(it, (WaitVM, WaitLDS)):
            for t in it.toks:
                assert getattr(t, "done", False), ("wait on instruction not yet emitted", t)
        if isinstance(it, WaitVM):
            idx = [i for i, o in enumerate(self.vm) if any(o is t for t in it.toks)]
            if idx:
                self._wait(nv=len(self.vm) - 1 - max(idx))
            return
        if isinstance(it, WaitLDS):
            idx = [i for i, o in enumerate(self.lds) if any(o is t for t in it.toks)]
            if idx:
                self._wait(nl=len(self.lds) - 1 - max(idx))
            return
        ins = it
        if ins.op == "s_waitcnt":
            m = re.search(r"vmcnt\((\d+)\)", ins.text)
            nv = int(m.group(1)) if m else None
            m = re.search(r"lgkmcnt\((\d+)\)", ins.text)
            nl = int(m.group(1)) if m else None
            if nv is not None and nv < len(self.vm):
                self.vm = self.vm[len(self.vm) - nv:] if nv else []
            if nl is not None and (nl == 0 or not self.smem):
                if nl < len(self.lds):
                    self.lds = self.lds[len(self.lds) - nl:] if nl else []
                if nl == 0:
                    self.smem = False; self.smem_regs = set()
            self.lines.append("  " + ins.text)
            self._push(ins)
            return
        touch = ins.reads | ins.writes
        nl = nv = None
        for i, o in enumerate(self.lds):
            if o.is_load and o.writes & touch:
                nl = len(self.lds) - 1 - i
        for i, o in enumerate(self.vm):
            if o.is_load and o.writes & touch:
                nv = len(self.vm) - 1 - i
        if self.smem and self.smem_regs & touch:
            nl = 0
        self._wait(nl, nv)
        dist = 0
        need = 0
        for prev, st in reversed(self.hist):
            n = hazard_need(prev, ins)
            if n - dist > need:
                need = n - dist
            dist += st
        while need > 0:
            k = min(need, 16)
            self.lines.append(f"  s_nop {k-1}")
            self._push(Ins(f"s_nop {k-1}"), k)
            self.stats["nop"] += k
            need -= k
        self.lines.append("  " + ins.text)
        st = 1
        if ins.op == "s_nop":
            st = int(ins.ops[0]) + 1
        self._push(ins, st)
        self.stats["n"] += 1
        assert not getattr(ins, "done", False), ("emitted twice", ins)
        ins.done = True
        if ins.kind == "ds":
            self.lds.append(ins)
        elif ins.kind == "vmem":
            self.vm.append(ins)
        elif ins.kind == "smem":
            self.smem = True
            self.smem_regs |= ins.writes

    def text(self):
        return "\n".join(self.lines) + "\n"


def I(s, **k):
    return [Ins(l, **k) for l in s.split("\n") if l.strip()]


def interleave(main, fillers, budget=24, verbose=None):
    gaps = [[]]
    labels = {}
    for it in main:
        if isinstance(it, Mark):
            labels[it.label] = len(gaps)
            continue
        if it.kind == "mfma":
            gaps.append([it])
        else:
            gaps[-1].append(it)
    ng = len(gaps)
    used = [sum(x.cost for x in g if x.kind != "mfma") for g in gaps]
    cap = []
    for g in gaps:
        if g and g[0].kind == "mfma":
            cap.append(budget if g[0].passes == 8 else 8)
        else:
            cap.append(0)
    extra = [[] for _ in gaps]
    for (l0, l1, items) in fillers:
        segs = [(labels[l0], [])]
        for it in items:
            if isinstance(it, Hold):
                segs.append((labels[it.label], []))
            else:
                segs[-1][1].append(it)
        end = min(labels[l1], ng)
        pos = labels[l0]

        def place(over, commit):
            g = labels[l0]
            u = list(used)
            carry = 0.0
            out = []
            for (st, its) in segs:
                if st > g:
                    g = st; carry = 0.0
                for it in its:
                    c = 8 if it.kind == "mfma" else it.cost
                    if not it.glue:
                        while g < end and u[g] + c > cap[g] + over + 1e-9:
                            g += 1
                    if g >= end:
                        return None
                    u[g] += c
                    if it.kind == "mfma":
                        u[g] -= (it.cost)
                    out.append((g, it))
            return out, u
        over = 0
        while True:
            r = place(over, True)
            if r is not None:
                break
            over += 2
            assert over < 400, ("cannot place", l0, l1)
        out, used = r
        for g, it in out:
            extra[g].append(it)
        if verbose is not None:
            last = out[-1][0] if out else None
            verbose.append(f"filler {l0}->{l1}: {len(out)} items, over={over}, gaps {labels[l0]}..{end}, last used {last}")
    res = []
    for g, e in zip(gaps, extra):
        res += g + e
    return res
```

```python
import sys, struct, math
from fw import *

NAME = "gated_mix__linear_kernel_hedgehog__glu_gated_geglu__prompt"


def f2u(x):
    return struct.unpack("<I", struct.pack("<f", x))[0]


LOG2E = 1.4426950408889634
K1 = -2.0 * math.sqrt(2.0 / math.pi) * LOG2E
K2 = K1 * 0.044715

WS_H = 0
WS_KVX = 0xA00000
WS_KVZ = 0xA80000
WS_FL = 0xA90000
WS_PROF = 0xB00000
WS_SIZE = 0xC00000
OOB = 0x7FFFFF00

L_W = 0
L_X = 65536
L_PK = 65536
L_PV = 98304
L_CG = 115712
L_CZ = L_CG + 1024
L_CP = L_CG + 2048
L_GX = L_CG + 4096
L_FX = 32768
LDS_BYTES = 163840

P_X, P_WQKV, P_WPHI, P_WO, P_BX, P_WG, P_WU, P_WD, P_GW, P_OUT, P_DBG, P_WS = range(4, 28, 2)
R_X, R_W, R_WS, R_WD, R_WO, R_OUT, R_DBG = 28, 32, 36, 40, 44, 48, 52
S_RT = 56
S_WAVE, S_WR, S_WC, S_M, S_RB, S_ROT = 58, 59, 60, 61, 62, 63
S_CH = 64
S_CH3 = 72
S_W4K, S_W8K, S_TX, S_TW = 76, 77, 78, 79
S_W2B, S_W2N, S_W3B, S_W3N = 80, 82, 84, 86
S_TYPE = 83
S_H1, S_H2, S_H3 = 87, 88, 89
S_L0, S_L1, S_L4 = 90, 91, 92
S_AB, S_PB = 93, 94
S_T0, S_T1, S_T2 = 95, 96, 97
S_SPIN = 98
S_KV = 99
S_ST0 = 100

ACCA, ACCB = 0, 64
WF = 128
GF = 144
GA = 152
XA = 156
XV = 164
WV = 168
WA, WA3, GAD = 172, 173, 174
LANE = 175
NONCE = 176
PF = 178
POLL8, POLL4, FLOFF = 180, 181, 182
L16 = 183
C1 = 184
GG = 186
HV = 188
AV = 190
PHI = 192
BA = 200
VK1 = 206
VL2E = 207
T = 208


def v(a, n=1):
    return f"v{a}" if n == 1 else f"v[{a}:{a+n-1}]"


def a_(a, n=1):
    return f"a{a}" if n == 1 else f"a[{a}:{a+n-1}]"


def s(a, n=1):
    return f"s{a}" if n == 1 else f"s[{a}:{a+n-1}]"


class Cfg:
    prof = False
    rotmode = 2
    budget = 24
    dma_flags = ""
    spin_limit = 1 << 14


class Gen:
    def __init__(self, cfg):
        self.cfg = cfg
        self.slow = []
        self.nlab = 0
        self.log = []

    def stamp(self, i):
        if not self.cfg.prof:
            return []
        return [Ins(f"s_memtime {s(4+2*i,2)}", cost=4)]

    def poll_issue(self, voff, srd, soff, imm):
        txt = f"buffer_load_dwordx2 {v(PF,2)}, {v(voff)}, {s(srd,4)}, {soff} offen offset:{imm} sc1"
        return Ins(txt)

    def poll_check(self, ld):
        n = self.nlab; self.nlab += 1
        self.slow.append(f"""L_slow{n}:
  s_mov_b32 {s(S_SPIN)}, 0
L_slow{n}_l:
  s_add_u32 {s(S_SPIN)}, {s(S_SPIN)}, 1
  s_cmp_gt_u32 {s(S_SPIN)}, {self.cfg.spin_limit}
  s_cbranch_scc1 L_ret{n}
  {ld.text}
  s_waitcnt vmcnt(0)
  v_cmp_ne_u64 vcc, {v(PF,2)}, {v(NONCE,2)}
  s_cbranch_vccnz L_slow{n}_l
  s_branch L_ret{n}""")
        return [Ins(f"v_cmp_ne_u64 vcc, {v(PF,2)}, {v(NONCE,2)}"),
                Ins(f"s_cbranch_vccnz L_slow{n}", glue=True), Raw(f"L_ret{n}:", glue=True)]

    def nonce_issue(self):
        return Ins(f"buffer_load_dwordx2 {v(NONCE,2)}, off, {s(R_DBG,4)}, 0 sc1")

    def nonce_check(self, ld):
        n = self.nlab; self.nlab += 1
        self.slow.append(f"""L_slow{n}:
  s_mov_b32 {s(S_SPIN)}, 0
L_slow{n}_l:
  s_add_u32 {s(S_SPIN)}, {s(S_SPIN)}, 1
  s_cmp_gt_u32 {s(S_SPIN)}, {self.cfg.spin_limit}
  s_cbranch_scc1 L_ret{n}
  {ld.text}
  s_waitcnt vmcnt(0)
  v_min_u32 {v(PF)}, {v(NONCE)}, {v(NONCE+1)}
  v_cmp_eq_u32 vcc, 0, {v(PF)}
  s_cbranch_vccnz L_slow{n}_l
  s_branch L_ret{n}""")
        return [Ins(f"v_min_u32 {v(PF)}, {v(NONCE)}, {v(NONCE+1)}"), Ins(f"v_cmp_eq_u32 vcc, 0, {v(PF)}", glue=True),
                Ins(f"s_cbranch_vccnz L_slow{n}", glue=True), Raw(f"L_ret{n}:", glue=True)]

    def flag_store(self, idx):
        return Ins(f"buffer_store_dwordx2 {v(NONCE,2)}, {v(FLOFF)}, {s(R_WS,4)}, 0 offen offset:{idx*8} sc1")

    def dma_x(self, c):
        out = I(f"s_add_u32 m0, {s(S_W4K)}, {L_X + (c % 3) * 16384}\ns_lshl_b32 {s(S_TX)}, {s(S_CH + c)}, 7")
        d = [Ins(f"buffer_load_dwordx4 {v(XV+j)}, {s(R_X,4)}, {s(S_TX)} offen offset:{j*1024} {self.cfg.dma_flags} lds") for j in range(4)]
        return out, d

    def dma_w(self, typ, c):
        if c < 16:
            rs = 3072 if (typ == "K" and c < 8) else 3584
            ch = S_CH + (c % 8)
        else:
            rs = 3584 if typ == "K" else 3072
            ch = S_CH3 + (c - 16)
        pre = []
        if c == 8:
            pre += I(f"s_mov_b32 {s(R_W)}, {s(S_W2B)}\ns_mov_b32 {s(R_W+1)}, {s(S_W2B+1)}\ns_mov_b32 {s(R_W+2)}, {s(S_W2N)}")
            if typ == "K":
                pre += self.wv_full(3584)
        if c == 16:
            pre += I(f"s_mov_b32 {s(R_W)}, {s(S_W3B)}\ns_mov_b32 {s(R_W+1)}, {s(S_W3B+1)}\ns_mov_b32 {s(R_W+2)}, {s(S_W3N)}")
            pre += self.wv_half() if typ == "K" else self.wv_full(3072)
        pre += I(f"s_add_u32 m0, {s(S_W4K)}, {L_W + (c % 4) * 16384}\ns_mul_i32 {s(S_TW)}, {s(ch)}, {64*rs}")
        d = [Ins(f"buffer_load_dwordx4 {v(WV+j)}, {s(R_W,4)}, {s(S_TW)} offen offset:{j*1024} {self.cfg.dma_flags} lds") for j in range(4)]
        return pre, d

    def wv_full(self, rs):
        o = I(f"""v_lshrrev_b32 {v(WV+1)}, 3, {v(LANE)}
v_lshl_add_u32 {v(WV+1)}, {s(S_WC)}, 5, {v(WV+1)}
v_mul_u32_u24 {v(WV+1)}, {rs}, {v(WV+1)}
v_lshrrev_b32 {v(WV+2)}, 2, {v(LANE)}
v_and_b32 {v(WV+2)}, 4, {v(WV+2)}
v_and_b32 {v(WV+3)}, 7, {v(LANE)}
v_xor_b32 {v(WV+2)}, {v(WV+2)}, {v(WV+3)}
v_lshl_add_u32 {v(WV)}, {v(WV+2)}, 4, {v(WV+1)}""")
        for j in range(1, 4):
            o += I(f"v_add_u32 {v(WV+j)}, {j*(8*rs-1024)}, {v(WV)}")
        return o

    def wv_half(self):
        o = I(f"""v_lshrrev_b32 {v(WV+1)}, 2, {v(LANE)}
v_mul_u32_u24 {v(WV+1)}, 3584, {v(WV+1)}
v_and_b32 {v(WV+2)}, 3, {v(LANE)}
v_lshlrev_b32 {v(WV+3)}, 1, {s(S_WR)}
v_xor_b32 {v(WV+2)}, {v(WV+2)}, {v(WV+3)}
v_lshl_add_u32 {v(WV)}, {v(WV+2)}, 4, {v(WV+1)}""")
        for j in range(1, 4):
            o += I(f"v_add_u32 {v(WV+j)}, {j*(16*3584-1024)}, {v(WV)}")
        return o

    def bv_setup(self):
        o = I(f"""v_lshrrev_b32 {v(XV+1)}, 3, {v(LANE)}
v_lshlrev_b32 {v(XV+1)}, 10, {v(XV+1)}
v_lshrrev_b32 {v(XV+2)}, 2, {v(LANE)}
v_and_b32 {v(XV+2)}, 4, {v(XV+2)}
v_and_b32 {v(XV+3)}, 7, {v(LANE)}
v_xor_b32 {v(XV+2)}, {v(XV+2)}, {v(XV+3)}
v_lshl_add_u32 {v(XV)}, {v(XV+2)}, 4, {v(XV+1)}""")
        for j in range(1, 4):
            o += I(f"v_add_u32 {v(XV+j)}, {j*(8*1024-1024)}, {v(XV)}")
        return o

    BLK = [(12, S_L0), (12, S_L1), (0, S_L0), (0, S_L1), (20, S_L0), (20, S_L1), (8, S_L4), (28, S_L0), (28, S_L1)]

    def dma_b(self, b, quad, half):
        base, sl = self.BLK[b]
        srd = R_WD
        if base == 28:
            srd, base = R_WO, 0
        pre = I(f"""s_add_u32 m0, {s(S_W8K)}, {quad*32768 + half*4096}
s_lshl_b32 {s(S_TX)}, {s(sl)}, 16
s_add_u32 {s(S_TX)}, {s(S_TX)}, {base*65536 + half*32768}""")
        d = [Ins(f"buffer_load_dwordx4 {v(XV+j)}, {s(srd,4)}, {s(S_TX)} offen offset:{j*1024} {self.cfg.dma_flags} lds") for j in range(4)]
        return pre, d

    def xfer_b(self, b, quad):
        o = []
        areg = (b % 8) * 32
        for ks in range(4):
            for cc in range(2):
                for h in range(2):
                    ad = BA + 2 * (quad // 2) + cc
                    off = (quad % 2) * 32768 + ks * 2048 + h * 1024
                    r = areg + (ks * 2 + cc) * 4 + h * 2
                    o.append(Ins(f"ds_read_b64_tr_b16 {a_(r,2)}, {v(ad)} offset:{off}"))
        return o

    def load_a(self, b, dst):
        base, sl = self.BLK[b]
        pre = I(f"""s_lshl_b32 {s(S_T0)}, {s(sl)}, 13
s_add_u32 {s(S_T0)}, {s(S_T0)}, {s(S_AB)}
s_add_u32 {s(S_T0)}, {s(S_T0)}, {base*8192}
s_add_u32 {s(S_T1)}, {s(S_T0)}, 4096""")
        d = []
        for ks in range(4):
            for rt in range(2):
                r = dst + (ks * 2 + rt) * 4
                d.append(Ins(f"buffer_load_dwordx4 {v(r,4)}, {v(AV+rt)}, {s(R_WS,4)}, {s(S_T0 + ks//2)} offen offset:{(ks&1)*2048} sc1"))
        return pre, d

    def gu_frag(self, g, u, rt, soff, imm, t0=T, d0=T + 8):
        o = []
        c = v(C1 + rt)
        R = range(8)
        o += [Ins(f"v_mul_f32 {v(t0+i)}, {v(g+i)}, {v(g+i)}") for i in R]
        o += [Ins(f"v_fmamk_f32 {v(t0+i)}, {v(t0+i)}, {hex(f2u(K2))}, {v(VK1)}") for i in R]
        o += [Ins(f"v_mul_f32 {v(t0+i)}, {v(t0+i)}, {v(g+i)}") for i in R]
        for i in R:
            o.append(Ins(f"v_exp_f32 {v(t0+i)}, {v(t0+i)}"))
            o.append(Ins(f"v_mul_f32 {v(u+i)}, {v(g+i)}, {v(u+i)}"))
        for i in range(9):
            if i < 8:
                o.append(Ins(f"v_fma_f32 {v(t0+i)}, {v(t0+i)}, {c}, {c}"))
            if i > 0:
                o.append(Ins(f"v_rcp_f32 {v(t0+i-1)}, {v(t0+i-1)}"))
        o += [Ins(f"v_mul_f32 {v(u+i)}, {v(u+i)}, {v(t0+i)}") for i in R]
        o += [Ins(f"v_cvt_pk_bf16_f32 {v(d0+i)}, {v(u+2*i)}, {v(u+2*i+1)}") for i in range(4)]
        st = Ins(f"buffer_store_dwordx4 {v(d0,4)}, {v(HV+rt)}, {s(R_WS,4)}, {s(soff)} offen offset:{imm} sc1")
        o.append(st)
        return o, st

    def gu_full(self, acc, soff, rts=(0, 1)):
        o, sts = [], []
        k = 0
        for rt in rts:
            for t in range(2):
                x, st = self.gu_frag(acc + rt * 16 + t * 8, acc + 32 + rt * 16 + t * 8, rt, soff, t * 2048, d0=T + 8 + 4 * (k & 1))
                o += x; sts.append(st); k += 1
        return o, sts

    def softmax(self, P, D, t0):
        o = []
        a, b = t0, t0 + 1
        o.append(Ins(f"v_max3_f32 {v(a)}, {v(P)}, {v(P+1)}, {v(P+2)}"))
        o.append(Ins(f"v_max3_f32 {v(b)}, {v(P+8)}, {v(P+9)}, {v(P+10)}"))
        o.append(Ins(f"v_max3_f32 {v(a)}, {v(a)}, {v(P+3)}, {v(P+4)}"))
        o.append(Ins(f"v_max3_f32 {v(b)}, {v(b)}, {v(P+11)}, {v(P+12)}"))
        o.append(Ins(f"v_max3_f32 {v(a)}, {v(a)}, {v(P+5)}, {v(P+6)}"))
        o.append(Ins(f"v_max3_f32 {v(b)}, {v(b)}, {v(P+13)}, {v(P+14)}"))
        o.append(Ins(f"v_max3_f32 {v(a)}, {v(a)}, {v(P+7)}, {v(P+15)}"))
        o.append(Ins(f"v_max_f32 {v(a)}, {v(a)}, {v(b)}"))
        o.append(Ins(f"v_mul_f32 {v(a)}, {hex(f2u(-LOG2E))}, {v(a)}"))
        for i in range(19):
            if i < 16:
                o.append(Ins(f"v_fma_f32 {v(P+i)}, {v(P+i)}, {v(VL2E)}, {v(a)}"))
            if 1 <= i < 17:
                o.append(Ins(f"v_exp_f32 {v(P+i-1)}, {v(P+i-1)}"))
            j = i - 3
            if j == 1:
                o.append(Ins(f"v_add_f32 {v(b)}, {v(P)}, {v(P+1)}"))
            elif j > 1:
                o.append(Ins(f"v_add_f32 {v(b)}, {v(b)}, {v(P+j)}"))
        o.append(Ins(f"v_rcp_f32 {v(b)}, {v(b)}"))
        for i in range(16):
            o.append(Ins(f"v_mul_f32 {v(P+i)}, {v(P+i)}, {v(b)}"))
        for i in range(8):
            o.append(Ins(f"v_cvt_pk_bf16_f32 {v(D+i)}, {v(P+2*i)}, {v(P+2*i+1)}"))
        return o

    def gate_consts(self, src, rt):
        t = T + 16
        return I(f"""v_mul_f32 {v(t)}, {v(VL2E)}, {v(src)}
v_exp_f32 {v(C1+rt)}, {v(t)}
v_exp_f32 {v(GG+rt)}, -{v(t)}
v_add_f32 {v(C1+rt)}, 1.0, {v(C1+rt)}
v_add_f32 {v(GG+rt)}, 1.0, {v(GG+rt)}
v_min_f32 {v(C1+rt)}, {hex(f2u(2.0**100))}, {v(C1+rt)}
v_rcp_f32 {v(GG+rt)}, {v(GG+rt)}""")

    def prologue(self, e):
        cfg = self.cfg
        e.emit(f"""s_cmp_ge_u32 s2, 256
s_cbranch_scc1 L_end
s_load_dwordx16 s[4:19], s[0:1], 0
s_load_dwordx8 s[20:27], s[0:1], 64
s_memrealtime {s(S_RT,2)}""")
        if cfg.prof:
            e.emit(f"s_memtime {s(S_ST0,2)}")
        e.emit(f"""v_lshrrev_b32 v1, 6, v0
v_and_b32 {v(LANE)}, 63, v0
v_readfirstlane_b32 {s(S_WAVE)}, v1
s_and_b32 {s(S_T0)}, s2, 7
s_lshr_b32 {s(S_T1)}, s2, 3
s_lshr_b32 {s(S_RB)}, {s(S_T0)}, 2
s_lshl_b32 {s(S_RB)}, {s(S_RB)}, 3
s_and_b32 {s(S_T2)}, {s(S_T1)}, 7
s_add_u32 {s(S_RB)}, {s(S_RB)}, {s(S_T2)}
s_lshr_b32 {s(S_T1)}, {s(S_T1)}, 3
s_lshr_b32 {s(S_TYPE)}, {s(S_T1)}, 1
s_and_b32 {s(S_M)}, {s(S_T0)}, 3
s_lshl_b32 {s(S_M)}, {s(S_M)}, 1
s_and_b32 {s(S_TX)}, {s(S_T1)}, 1
s_add_u32 {s(S_M)}, {s(S_M)}, {s(S_TX)}""")
        if cfg.rotmode == 0:
            e.emit(f"s_mov_b32 {s(S_ROT)}, 0")
        elif cfg.rotmode == 1:
            e.emit(f"s_add_u32 {s(S_ROT)}, {s(S_T1)}, {s(S_T2)}\ns_and_b32 {s(S_ROT)}, {s(S_ROT)}, 1\ns_lshl_b32 {s(S_ROT)}, {s(S_ROT)}, 2")
        elif cfg.rotmode == 3:
            e.emit(f"s_add_u32 {s(S_ROT)}, {s(S_T1)}, {s(S_T2)}\ns_and_b32 {s(S_ROT)}, {s(S_ROT)}, 3\ns_lshl_b32 {s(S_ROT)}, {s(S_ROT)}, 1")
        else:
            e.emit(f"s_lshl_b32 {s(S_ROT)}, {s(S_T1)}, 1\ns_add_u32 {s(S_ROT)}, {s(S_ROT)}, {s(S_T2)}\ns_and_b32 {s(S_ROT)}, {s(S_ROT)}, 7")
        e.emit(f"""s_lshr_b32 {s(S_WR)}, {s(S_WAVE)}, 1
s_and_b32 {s(S_WC)}, {s(S_WAVE)}, 1
s_lshl_b32 {s(S_W4K)}, {s(S_WAVE)}, 12
s_lshl_b32 {s(S_W8K)}, {s(S_WAVE)}, 13
s_mov_b32 {s(S_CH)}, {s(S_ROT)}
s_add_u32 {s(S_CH+1)}, {s(S_ROT)}, 1
s_and_b32 {s(S_CH+1)}, {s(S_CH+1)}, 7""")
        e.emit(f"""v_lshrrev_b32 v2, 3, {v(LANE)}
v_lshl_add_u32 v2, {s(S_WAVE)}, 5, v2
v_lshlrev_b32 v2, 10, v2
v_lshrrev_b32 v3, 4, {v(LANE)}
v_and_b32 v4, 7, {v(LANE)}
v_xor_b32 v3, v3, v4
v_lshl_add_u32 {v(XV)}, v3, 4, v2
v_xor_b32 v5, 64, {v(XV)}
v_add_u32 {v(XV+1)}, {8192-1024}, v5
v_add_u32 {v(XV+2)}, {2*(8192-1024)}, {v(XV)}
v_add_u32 {v(XV+3)}, {3*(8192-1024)}, v5
v_lshlrev_b32 {v(L16)}, 4, {v(LANE)}""")
        e.emit(f"""s_lshl_b32 {s(S_TX)}, {s(S_RB)}, 17
s_mov_b32 {s(R_X+2)}, 0x20000
s_mov_b32 {s(R_X+3)}, 0x20000
s_mov_b32 {s(R_W+3)}, 0x20000
s_add_u32 {s(R_X)}, {s(P_X)}, {s(S_TX)}
s_addc_u32 {s(R_X+1)}, {s(P_X+1)}, 0
s_cmp_eq_u32 {s(S_TYPE)}, 1
s_cbranch_scc1 L_typeQ""")

    def setup1(self, typ):
        o = []
        if typ == "K":
            o += I(f"""s_lshl_b32 {s(S_TX)}, {s(S_M)}, 7
s_lshl_b32 {s(S_TW)}, {s(S_WR)}, 10
s_add_u32 {s(S_TX)}, {s(S_TX)}, {s(S_TW)}
s_add_u32 {s(S_TX)}, {s(S_TX)}, 1024
s_add_u32 {s(R_W)}, {s(P_WQKV)}, {s(S_TX)}
s_addc_u32 {s(R_W+1)}, {s(P_WQKV+1)}, 0
s_sub_u32 {s(R_W+2)}, {512*3072}, {s(S_TX)}""")
            o += self.wv_full(3072)
        else:
            o += I(f"""s_cmp_eq_u32 {s(S_WR)}, 0
s_cselect_b32 {s(R_W)}, {s(P_WG)}, {s(P_WU)}
s_cselect_b32 {s(R_W+1)}, {s(P_WG+1)}, {s(P_WU+1)}
s_lshl_b32 {s(S_TX)}, {s(S_M)}, 7
s_add_u32 {s(S_TX)}, {s(S_TX)}, {12*128}
s_add_u32 {s(R_W)}, {s(R_W)}, {s(S_TX)}
s_addc_u32 {s(R_W+1)}, {s(R_W+1)}, 0
s_sub_u32 {s(R_W+2)}, {512*3584}, {s(S_TX)}""")
            o += self.wv_full(3584)
        return o

    def setup2(self, typ):
        o = []
        A = lambda t: o.extend(I(t))
        A(f"""s_lshl_b32 {s(S_TX)}, {s(S_ROT)}, 7
v_add_u32 v1, {s(S_TX)}, {v(L16)}
v_and_b32 v1, 1023, v1
s_lshl_b32 {s(S_TX)}, {s(S_M)}, 11
s_lshl_b32 {s(S_TW)}, {s(S_WR)}, 10
s_add_u32 {s(S_TX)}, {s(S_TX)}, {s(S_TW)}
v_add_u32 v2, {s(S_TX)}, {v(L16)}
s_add_u32 {s(S_TW)}, {s(S_TW)}, {L_CP}
s_cmp_eq_u32 {s(S_WR)}, {s(S_WC)}
s_cselect_b64 vcc, -1, 0
s_cselect_b32 {s(P_BX)}, {s(P_GW)}, {s(P_WPHI)}
s_cselect_b32 {s(P_BX+1)}, {s(P_GW+1)}, {s(P_WPHI+1)}
s_cselect_b32 m0, {L_CG}, {s(S_TW)}
v_cndmask_b32 v1, v2, v1, vcc""")
        self.cdma = Ins(f"global_load_lds_dwordx4 v1, {s(P_BX,2)}")
        o.append(self.cdma)
        A(f"""s_mov_b32 {s(R_WS)}, {s(P_WS)}
s_mov_b32 {s(R_WS+1)}, {s(P_WS+1)}
s_mov_b32 {s(R_WS+2)}, {WS_SIZE}
s_mov_b32 {s(R_WS+3)}, 0x20000
s_mov_b32 {s(R_DBG)}, {s(P_DBG)}
s_mov_b32 {s(R_DBG+1)}, {s(P_DBG+1)}
s_mov_b32 {s(R_DBG+2)}, 256
s_mov_b32 {s(R_DBG+3)}, 0x20000""")
        A(f"""s_or_b32 {s(S_RT)}, {s(S_RT)}, 1
s_or_b32 {s(S_RT+1)}, {s(S_RT+1)}, 0x80000000
v_mov_b32 v4, {s(S_RT)}
v_mov_b32 v5, {s(S_RT+1)}
v_lshl_add_u32 v3, s2, 8, v0
v_lshlrev_b32 v3, 8, v3
buffer_store_dwordx2 v[4:5], v3, {s(R_DBG,4)}, 0 offen sc1""")
        A(f"""v_mov_b32 v6, 0
v_lshlrev_b32 v7, 2, v0
v_add_u32 v7, {L_CZ}, v7""")
        self.zw = Ins("ds_write_b32 v7, v6")
        o.append(self.zw)
        A(f"""s_lshl_b32 {s(S_TX)}, {s(S_RB)}, 4
s_add_u32 {s(S_TX)}, {s(S_TX)}, {s(S_M)}
s_lshl_b32 {s(S_TX)}, {s(S_TX)}, 7
s_add_u32 {s(S_TX)}, {s(S_TX)}, {WS_FL + (1024 if typ == 'Q' else 0)}
v_mov_b32 v8, {OOB}
v_mov_b32 v9, {s(S_TX)}
v_cmp_eq_u32 vcc, 0, v0
v_mov_b32 {v(VK1)}, {hex(f2u(K1))}
v_mov_b32 {v(VL2E)}, {hex(f2u(LOG2E))}
v_cndmask_b32 {v(FLOFF)}, v8, v9, vcc""")
        for i in range(2, 8):
            A(f"s_add_u32 {s(S_CH+i)}, {s(S_ROT)}, {i}\ns_and_b32 {s(S_CH+i)}, {s(S_CH+i)}, 7")
        A(f"s_cmp_eq_u32 {s(S_WC if typ == 'K' else S_WR)}, 0")
        for i in range(4):
            A(f"s_cselect_b32 {s(S_CH3+i)}, {s(S_CH+2*i)}, {s(S_CH+2*i+1)}")
        A(f"""v_lshrrev_b32 v10, 5, {v(LANE)}
v_bfe_u32 v11, {v(LANE)}, 4, 1
v_bfe_u32 v12, {v(LANE)}, 2, 2
v_and_b32 v13, 3, {v(LANE)}
v_and_b32 v14, 31, {v(LANE)}""")
        A(f"""v_bfe_u32 v15, {v(LANE)}, 1, 3
v_xor_b32 v15, v15, v10
v_lshlrev_b32 v15, 4, v15
v_lshl_add_u32 v15, v14, 7, v15
s_lshl_b32 {s(S_TX)}, {s(S_WAVE)}, 12
s_add_u32 {s(S_TX)}, {s(S_TX)}, {L_X}
v_add_u32 {v(XA)}, {s(S_TX)}, v15""")
        for ks in range(4):
            for rt in range(2):
                if ks or rt:
                    A(f"v_xor_b32 {v(XA+ks*2+rt)}, {ks*32 + rt*4096}, {v(XA)}")
        A(f"""v_lshlrev_b32 v16, 3, v13
v_lshl_add_u32 v16, v11, 5, v16
v_lshrrev_b32 v17, 1, v12
v_xor_b32 v17, {s(S_WC)}, v17
v_lshl_add_u32 v17, v17, 6, v16
v_lshl_add_u32 v18, v10, 3, v12
v_lshl_add_u32 {v(WA)}, v18, 7, v17""")
        if typ == "K":
            A(f"""v_xor_b32 v19, {s(S_WC)}, v11
v_lshlrev_b32 v19, 5, v19
v_lshl_add_u32 v19, v13, 3, v19
v_lshl_add_u32 v19, v18, 6, v19
v_lshl_add_u32 {v(WA3)}, v11, 13, v19""")
        A(f"""v_lshl_add_u32 v18, v10, 2, v12
v_lshl_add_u32 v19, v18, 7, v17
v_add_u32 {v(BA)}, {s(S_W8K)}, v19
v_xor_b32 {v(BA+1)}, 64, {v(BA)}
v_add_u32 {v(BA+2)}, 0x10000, {v(BA)}
v_add_u32 {v(BA+3)}, 0x10000, {v(BA+1)}
v_add_u32 {v(BA+4)}, 0x20000, {v(BA)}
v_add_u32 {v(BA+5)}, 0x20000, {v(BA+1)}""")
        A(f"""v_lshrrev_b32 v19, 1, v13
v_lshl_add_u32 v19, v11, 1, v19
v_lshlrev_b32 v19, 3, v19
v_lshl_add_u32 v19, v18, 5, v19
s_lshl_b32 {s(S_TX)}, {s(S_WC)}, 10
s_add_u32 {s(S_TX)}, {s(S_TX)}, {L_CP}
v_add_u32 {v(T)}, {s(S_TX)}, v19
v_and_b32 v19, 1, v12
v_mul_u32_u24 v19, 0x8000, v19
v_lshl_or_b32 {v(T+1)}, v19, 16, v19""")
        A(f"""v_xor_b32 v19, v12, v11
v_and_b32 v19, 1, v19
v_lshlrev_b32 v19, 10, v19
v_lshl_add_u32 v19, v10, 4, v19
v_add_u32 {v(GAD)}, {L_CG}, v19""")
        A(f"""v_lshl_add_u32 {v(HV)}, {s(S_WC)}, 10, {v(L16)}
v_xor_b32 {v(HV+1)}, 1024, {v(HV)}
v_lshl_add_u32 {v(AV)}, {s(S_WR)}, 10, {v(L16)}
v_xor_b32 {v(AV+1)}, 1024, {v(AV)}""")
        l2 = 0 if typ == "K" else 20
        A(f"""s_cmp_eq_u32 {s(S_WR)}, 0
s_cselect_b32 {s(S_W3B)}, {s(P_WG)}, {s(P_WU)}
s_cselect_b32 {s(S_W3B+1)}, {s(P_WG+1)}, {s(P_WU+1)}
s_lshl_b32 {s(S_TX)}, {s(S_M)}, 7
s_add_u32 {s(S_TW)}, {s(S_TX)}, {l2*128}
s_add_u32 {s(S_W2B)}, {s(S_W3B)}, {s(S_TW)}
s_addc_u32 {s(S_W2B+1)}, {s(S_W3B+1)}, 0
s_sub_u32 {s(S_W2N)}, {512*3584}, {s(S_TW)}""")
        if typ == "K":
            A(f"""s_lshl_b32 {s(S_TW)}, {s(S_M)}, 6
s_add_u32 {s(S_TW)}, {s(S_TW)}, {8*128}
s_add_u32 {s(S_W3B)}, {s(S_W3B)}, {s(S_TW)}
s_addc_u32 {s(S_W3B+1)}, {s(S_W3B+1)}, 0
s_sub_u32 {s(S_W3N)}, {512*3584}, {s(S_TW)}""")
        else:
            A(f"""s_add_u32 {s(S_W3B)}, {s(P_WQKV)}, {s(S_TX)}
s_addc_u32 {s(S_W3B+1)}, {s(P_WQKV+1)}, 0
s_sub_u32 {s(S_W3N)}, {512*3072}, {s(S_TX)}""")
        A(f"""s_lshl_b32 {s(S_TX)}, {s(S_RB)}, 1
s_add_u32 {s(S_TX)}, {s(S_TX)}, {s(S_WR)}
s_mul_i32 {s(S_TX)}, {s(S_TX)}, {36*8192}
s_lshl_b32 {s(S_TW)}, {s(S_M)}, 13
s_lshl_b32 {s(S_KV)}, {s(S_WC)}, 12
s_add_u32 {s(S_TW)}, {s(S_TW)}, {s(S_KV)}
s_add_u32 {s(S_TW)}, {s(S_TW)}, {s(S_TX)}""")
        if typ == "K":
            A(f"""s_mov_b32 {s(S_H2)}, {s(S_TW)}
s_lshl_b32 {s(S_TW)}, {s(S_M)}, 12
s_lshl_b32 {s(S_KV)}, {s(S_WC)}, 11
s_add_u32 {s(S_TW)}, {s(S_TW)}, {s(S_KV)}
s_add_u32 {s(S_TW)}, {s(S_TW)}, {s(S_TX)}
s_add_u32 {s(S_H3)}, {s(S_TW)}, {8*8192}""")
        else:
            A(f"""s_add_u32 {s(S_H1)}, {s(S_TW)}, {12*8192}
s_add_u32 {s(S_H2)}, {s(S_TW)}, {20*8192}
s_add_u32 {s(S_H3)}, {s(S_TW)}, {28*8192}""")
        A(f"""s_lshl_b32 {s(S_KV)}, {s(S_M)}, 2
s_lshl_b32 {s(S_TW)}, {s(S_WC)}, 1
s_add_u32 {s(S_KV)}, {s(S_KV)}, {s(S_TW)}
s_add_u32 {s(S_KV)}, {s(S_KV)}, {s(S_WR)}""")
        A(f"""s_lshl_b32 {s(S_TX)}, {s(S_T0)}, 2
s_add_u32 {s(S_TX)}, {s(S_TX)}, {s(S_T1)}
s_mul_i32 {s(S_AB)}, {s(S_TX)}, {36*8192}
s_lshr_b32 {s(S_PB)}, {s(S_TX)}, 1
s_lshl_b32 {s(S_PB)}, {s(S_PB)}, 11
s_add_u32 {s(S_PB)}, {s(S_PB)}, {WS_FL}
s_lshl_b32 {s(S_TW)}, {s(S_T2)}, 7
s_add_u32 {s(R_WD)}, {s(P_WD)}, {s(S_TW)}
s_addc_u32 {s(R_WD+1)}, {s(P_WD+1)}, 0
s_sub_u32 {s(R_WD+2)}, {1792*1024}, {s(S_TW)}
s_mov_b32 {s(R_WD+3)}, 0x20000
s_add_u32 {s(R_WO)}, {s(P_WO)}, {s(S_TW)}
s_addc_u32 {s(R_WO+1)}, {s(P_WO+1)}, 0
s_sub_u32 {s(R_WO+2)}, {512*1024}, {s(S_TW)}
s_mov_b32 {s(R_WO+3)}, 0x20000
s_lshl_b32 {s(S_TX)}, {s(S_TX)}, 16
s_add_u32 {s(S_TX)}, {s(S_TX)}, {s(S_TW)}
s_add_u32 {s(R_OUT)}, {s(P_OUT)}, {s(S_TX)}
s_addc_u32 {s(R_OUT+1)}, {s(P_OUT+1)}, 0
s_sub_u32 {s(R_OUT+2)}, {2048*1024}, {s(S_TX)}
s_mov_b32 {s(R_OUT+3)}, 0x20000
s_add_u32 {s(S_TW)}, {s(S_T1)}, {s(S_T2)}
s_lshl_b32 {s(S_L0)}, {s(S_WAVE)}, 1
s_add_u32 {s(S_L0)}, {s(S_L0)}, {s(S_TW)}
s_add_u32 {s(S_L1)}, {s(S_L0)}, 1
s_add_u32 {s(S_L4)}, {s(S_WAVE)}, {s(S_TW)}
v_and_b32 v19, 1, {v(LANE)}
v_add_u32 v20, {s(S_L0)}, v19
v_and_b32 v20, 7, v20
v_lshlrev_b32 {v(POLL8)}, 7, v20
s_and_b32 {s(S_L0)}, {s(S_L0)}, 7
s_and_b32 {s(S_L1)}, {s(S_L1)}, 7
s_and_b32 {s(S_L4)}, {s(S_L4)}, 3
v_lshl_add_u32 v20, {s(S_L4)}, 1, v19
v_lshlrev_b32 {v(POLL4)}, 7, v20""")
        return o

    def frag_reads(self, typ, G):
        c, gi = divmod(G, 4)
        F = WF + (G & 1) * 8
        slot = L_W + (c % 4) * 16384
        o = []
        for tile in range(2):
            for h in range(2):
                if c < 16:
                    ad, off = WA, slot + tile * 8192 + gi * 2048 + h * 512
                elif typ == "Q":
                    ad, off = WA, slot + (2 * gi + tile) * 2048 + h * 512
                else:
                    ad, off = WA3, slot + (2 * gi + tile) * 1024 + h * 256
                o.append(Ins(f"ds_read_b64_tr_b16 {v(F+tile*4+h*2,2)}, {v(ad)} offset:{off}"))
        return o

    def x_reads(self, G):
        c, gi = divmod(G, 4)
        o = [Ins(f"ds_read_b128 {a_((G*2+rt)*4,4)}, {v(XA+gi*2+rt)} offset:{(c%3)*16384}") for rt in range(2)]
        o.append(Ins(f"ds_read_b128 {v(GF+(G&1)*4,4)}, {v(GAD)} offset:{G*32}"))
        return o

    def mfmas(self, typ, G):
        c, gi = divmod(G, 4)
        F = WF + (G & 1) * 8
        o = []
        allr = [f"v{F+i}" for i in range(8)]
        if c < 8:
            allr += [f"a{G*8+i}" for i in range(8)] + [f"v{GF+(G&1)*4+i}" for i in range(4)]
        for tile in range(2):
            for rt in range(2):
                if c < 16:
                    xs = G % 32
                    acc = (ACCA if c < 8 else ACCB) + tile * 32 + rt * 16
                    first = xs == 0
                else:
                    xs = (G - 64) * 2 + tile
                    acc = ACCA + rt * 16
                    first = xs == 0
                X = a_((xs * 2 + rt) * 4, 4)
                W = v(F + tile * 4, 4)
                A_, B_ = (X, W) if (typ == "K" and c < 8 and tile == 1) else (W, X)
                C = "0" if first else v(acc, 16)
                o.append(Ins(f"v_mfma_f32_32x32x16_bf16 {v(acc,16)}, {A_}, {B_}, {C}", extra_reads=allr if not o else ()))
        if c < 8:
            C = "0" if G == 0 else v(GA, 4)
            o.append(Ins(f"v_mfma_f32_16x16x32_bf16 {v(GA,4)}, {v(GF+(G&1)*4,4)}, {a_(G*8,4)}, {C}"))
        return o

    def phase1(self, typ, e):
        cfg = self.cfg
        toks = {}
        e.emit(self.setup1(typ))
        for c in range(2):
            p, d = self.dma_x(c); e.emit(p); e.emit(d)
            p2, d2 = self.dma_w(typ, c); e.emit(p2); e.emit(d2)
            toks[c] = d + d2
            if c == 0:
                e.emit(self.setup2(typ))
        e.emit(self.stamp(0))
        e.emit([WaitVM(*toks[0], self.cdma), WaitLDS(self.zw), Ins("s_barrier")])
        e.emit(self.stamp(1))
        e.emit(self.frag_reads(typ, 0) + self.x_reads(0))

        plan = {b: [] for b in range(0, 21)}
        for c in range(2, 8):
            plan[c - 2].append(("x", c))
        for c in range(2, 9):
            plan[c - 2].append(("w", c))
        for c in range(9, 20):
            plan[c - 3].append(("w", c))
        bplan = {"Q": [(0, 4, 8), (1, 2, 10), (2, 3, 12), (3, 0, 18)], "K": [(0, 4, 8), (1, 2, 17), (2, 3, 18), (3, 0, 19)]}[typ]
        self.bquad = {}
        self.btok = {}
        for (b, q, st) in bplan:
            self.bquad[b] = q
            plan[st].append(("b", b, q, 0))
            plan[min(st + (1 if st < 17 else 0), 19)].append(("b", b, q, 1))
        pre_bar = {b: [] for b in range(0, 21)}
        post_bar = {b: [] for b in range(0, 21)}
        fillers = []

        nld = self.nonce_issue()
        f0 = []
        for en in range(2):
            for h in range(2):
                f0.append(Ins(f"ds_read_b64_tr_b16 {v(PHI+en*4+h*2,2)}, {v(T)} offset:{en*512+h*256}"))
        f0.append(Hold("g8"))
        f0 += [Ins(f"v_xor_b32 {v(PHI+i)}, {v(T+1)}, {v(PHI+i)}") for i in range(8)]
        f0 += [Hold("g16"), nld, Hold("g27")] + self.bv_setup() + [Hold("g29")] + self.nonce_check(nld)
        fillers.append(("g4", "g31", f0))
        gx = I(f"""v_lshlrev_b32 {v(T+17)}, 2, {v(LANE)}
v_lshl_add_u32 {v(T+17)}, {s(S_WAVE)}, 8, {v(T+17)}
v_add_u32 {v(T+17)}, {L_GX}, {v(T+17)}""")
        gw = Ins(f"ds_write_b32 {v(T+17)}, {v(GA)}")
        gx += [gw] + I(f"v_xor_b32 {v(T+17)}, 256, {v(T+17)}") + self.gate_consts(GA, 0)
        fillers.append(("g32", "g35", gx))
        pre_bar[9].append(WaitLDS(gw))
        gr = [Ins(f"ds_read_b32 {v(GA+1)}, {v(T+17)}"), Hold("g37")] + self.gate_consts(GA + 1, 1)
        fillers.append(("g35", "g39", gr))

        if typ == "Q":
            o0, s0 = self.gu_full(ACCA, S_H1, rts=(0,))
            o1, s1 = self.gu_full(ACCA, S_H1, rts=(1,))
            fillers.append(("g35", "g55", o0 + [Hold("g39")] + o1))
            pre_bar[16].append(WaitVM(*(s0 + s1)))
            post_bar[16].append(self.flag_store(0))
        else:
            KB = T + 20
            D = T + 36
            AD = T + 44
            fk = []
            for rt in range(2):
                for en in range(2):
                    b0 = ACCA + rt * 16 + en * 8
                    fk += [Ins(f"v_cvt_pk_bf16_f32 {v(KB+(rt*2+en)*4+i)}, {v(b0+2*i)}, {v(b0+2*i+1)}") for i in range(4)]

            def pk(u):
                return Ins(f"v_mfma_f32_32x32x16_bf16 {v(ACCA+(u&1)*16,16)}, {v(PHI+(u&1)*4,4)}, {v(KB+u*4,4)}, 0")
            fk.append(pk(0))
            fk += I(f"""s_lshl_b32 {s(S_T0)}, {s(S_WC)}, 1
s_add_u32 {s(S_T0)}, {s(S_T0)}, {s(S_WR)}
s_mul_i32 {s(S_T0)}, {s(S_T0)}, {4*1040}
s_add_u32 {s(S_T0)}, {s(S_T0)}, {L_PV}
v_add_u32 {v(AD)}, {s(S_T0)}, {v(L16)}
v_and_b32 {v(AD+1)}, 3, {v(LANE)}
v_mul_u32_u24 {v(AD+1)}, 1040, {v(AD+1)}
v_add_u32 {v(AD+1)}, {s(S_T0)}, {v(AD+1)}""")
            wts = []
            for rt in range(2):
                for t in range(2):
                    b0 = ACCA + 32 + rt * 16 + t * 8
                    d0 = T + (t & 1) * 4
                    fk += [Ins(f"v_cvt_pk_bf16_f32 {v(d0+i)}, {v(b0+2*i)}, {v(b0+2*i+1)}") for i in range(4)]
                    w_ = Ins(f"ds_write_b128 {v(AD)}, {v(d0,4)} offset:{(rt*2+t)*1040}")
                    fk.append(w_); wts.append(w_)
            fk += [Ins(f"v_mov_b32 {v(T+8+i)}, 0x3f803f80") for i in range(4)]
            w_ = Ins(f"ds_write_b128 {v(AD+1)}, {v(T+8,4)} offset:1024")
            fk.append(w_); wts.append(w_)
            fk.append(pk(1))
            fk += I(f"""v_lshrrev_b32 {v(AD)}, 5, {v(LANE)}
v_lshlrev_b32 {v(AD)}, 1, {v(AD)}
v_bfe_u32 {v(AD+1)}, {v(LANE)}, 1, 2
v_xor_b32 {v(AD)}, {v(AD)}, {v(AD+1)}
v_lshlrev_b32 {v(AD)}, 4, {v(AD)}
v_and_b32 {v(AD+1)}, 31, {v(LANE)}
v_lshl_add_u32 {v(AD)}, {v(AD+1)}, 6, {v(AD)}
s_lshl_b32 {s(S_T0)}, {s(S_WC)}, 14
s_lshl_b32 {s(S_T1)}, {s(S_WR)}, 12
s_add_u32 {s(S_T0)}, {s(S_T0)}, {s(S_T1)}
s_add_u32 {s(S_T0)}, {s(S_T0)}, {L_PK}
v_add_u32 {v(AD)}, {s(S_T0)}, {v(AD)}
v_xor_b32 {v(AD+1)}, 16, {v(AD)}""")
            for u in range(4):
                rt, en = divmod(u, 2)
                fk += self.softmax(ACCA + (u & 1) * 16, D, T + 12)
                if u + 2 < 4:
                    fk.append(pk(u + 2))
                for q in range(2):
                    w_ = Ins(f"ds_write_b128 {v(AD+q)}, {v(D+q*4,4)} offset:{en*8192+rt*2048}")
                    fk.append(w_); wts.append(w_)
            fk += I(f"""v_bfe_u32 {v(T)}, {v(LANE)}, 4, 1
v_and_b32 {v(T+1)}, 1, {v(LANE)}
v_lshl_add_u32 {v(T)}, {v(T+1)}, 1, {v(T)}
v_lshrrev_b32 {v(T+1)}, 5, {v(LANE)}
v_bfe_u32 {v(T+2)}, {v(LANE)}, 2, 2
v_lshl_add_u32 {v(T+2)}, {v(T+1)}, 2, {v(T+2)}
v_lshrrev_b32 {v(T+3)}, 1, {v(T+2)}
v_xor_b32 {v(T)}, {v(T)}, {v(T+3)}
v_lshlrev_b32 {v(T)}, 4, {v(T)}
v_lshl_add_u32 {v(T)}, {v(T+2)}, 6, {v(T)}
v_bfe_u32 {v(T+3)}, {v(LANE)}, 1, 1
v_lshl_add_u32 {v(T)}, {v(T+3)}, 3, {v(T)}
s_lshl_b32 {s(S_T0)}, {s(S_WC)}, 14
s_lshl_b32 {s(S_T1)}, {s(S_WR)}, 13
s_add_u32 {s(S_T0)}, {s(S_T0)}, {s(S_T1)}
s_add_u32 {s(S_T0)}, {s(S_T0)}, {L_PK}
v_add_u32 {v(AD+2)}, {s(S_T0)}, {v(T)}
v_lshl_add_u32 {v(T)}, {s(S_WR)}, 8, {v(L16)}
v_mov_b32 {v(T+1)}, 1024
v_and_b32 {v(T+2)}, 16, {v(LANE)}
v_cmp_eq_u32 vcc, 0, {v(T+2)}
s_mul_i32 {s(S_T0)}, {s(S_WC)}, {8*1040}
s_add_u32 {s(S_T0)}, {s(S_T0)}, {L_PV}
v_cndmask_b32 {v(T)}, {v(T+1)}, {v(T)}, vcc
v_add_u32 {v(AD+3)}, {s(S_T0)}, {v(T)}""")
            fillers.append(("g35", "g59", fk))
            pre_bar[15].append(WaitLDS(*wts))
            KV = ACCA + 32
            fv = []

            def kvr(u):
                b0 = T + (u & 3) * 8
                return [Ins(f"ds_read_b64_tr_b16 {v(b0,2)}, {v(AD+2)} offset:{u*1024}"),
                        Ins(f"ds_read_b64_tr_b16 {v(b0+2,2)}, {v(AD+2)} offset:{u*1024+512}"),
                        Ins(f"ds_read_b128 {v(b0+4,4)}, {v(AD+3)} offset:{u*1040}")]
            for u in range(3):
                fv += kvr(u)
            kvlast = None
            for u in range(8):
                if u + 3 < 8:
                    kvlast = kvr(u + 3)
                    fv += kvlast
                b0 = T + (u & 3) * 8
                fv.append(Ins(f"v_mfma_f32_32x32x16_bf16 {v(KV,16)}, {v(b0,4)}, {v(b0+4,4)}, {'0' if u == 0 else v(KV,16)}"))
            fv += I(f"""v_lshlrev_b32 {v(AD)}, 4, {v(LANE)}
v_and_b32 {v(AD+1)}, 15, {v(LANE)}
v_mov_b32 {v(AD+2)}, {OOB}
v_cmp_eq_u32 vcc, 0, {v(AD+1)}
s_lshl_b32 {s(S_T0)}, {s(S_KV)}, 4
s_add_u32 {s(S_T0)}, {s(S_T0)}, {s(S_RB)}
s_lshl_b32 {s(S_T0)}, {s(S_T0)}, 10
s_add_u32 {s(S_T0)}, {s(S_T0)}, {WS_KVX}
v_cndmask_b32 {v(AD)}, {v(AD+2)}, {v(AD)}, vcc
s_lshl_b32 {s(S_T1)}, {s(S_KV)}, 6
s_add_u32 {s(S_T1)}, {s(S_T1)}, {s(S_RB)}
s_lshl_b32 {s(S_T1)}, {s(S_T1)}, 4
s_add_u32 {s(S_T1)}, {s(S_T1)}, {WS_KVZ}""")
            fv += [Ins(f"v_cvt_pk_bf16_f32 {v(D+i)}, {v(KV+2*i)}, {v(KV+2*i+1)}") for i in range(8)]
            fv += [Ins(f"v_permlane16_swap_b32 {v(D+i)}, {v(D+4+i)}") for i in range(4)]
            sx = Ins(f"buffer_store_dwordx4 {v(D,4)}, {v(L16)}, {s(R_WS,4)}, {s(S_T0)} offen sc1")
            sz = Ins(f"buffer_store_dwordx4 {v(D+4,4)}, {v(AD)}, {s(R_WS,4)}, {s(S_T1)} offen sc1")
            fv += [sx, sz]
            fillers.append(("g59", "g65", fv))
            pre_bar[17].append(WaitLDS(*kvlast))
            pre_bar[18].append(WaitVM(sx, sz))
            post_bar[18].append(self.flag_store(0))
        o2, s2_ = self.gu_full(ACCB, S_H2)
        fillers.append(("g65", "g80", o2))
        self.st2 = s2_

        main = []
        pend = []

        def add_plan(b):
            for it in plan[b]:
                if it[0] == "x":
                    p, d = self.dma_x(it[1]); toks.setdefault(it[1], []).extend(d)
                elif it[0] == "w":
                    p, d = self.dma_w(typ, it[1]); toks.setdefault(it[1], []).extend(d)
                else:
                    p, d = self.dma_b(it[1], it[2], it[3]); self.btok.setdefault(it[1], []).extend(d)
                pend.append(p + [d[0]])
                pend.extend([[x] for x in d[1:]])
        add_plan(0)
        for G in range(80):
            c, gi = divmod(G, 4)
            mm = self.mfmas(typ, G)
            main.append(Mark(f"g{G}"))
            if G in (32, 64):
                main += self.stamp(2 if G == 32 else 3)
            main.append(mm[0])
            if gi == 3:
                assert not pend, (G, len(pend))
                if c + 1 < 20:
                    main.append(WaitVM(*toks[c + 1]))
                main += pre_bar[c + 1]
                main.append(Ins("s_barrier"))
                main += post_bar[c + 1]
                add_plan(c + 1)
            if G + 1 < 80:
                main += self.frag_reads(typ, G + 1)
            for k in range(1, len(mm)):
                main.append(mm[k])
                if k == 1 and G + 1 < 32:
                    main += self.x_reads(G + 1)
                    continue
                if k <= 3 and pend:
                    main += pend.pop(0)
                    if G < 4 and pend and k == 3:
                        main += pend.pop(0)
        assert not pend
        main.append(Mark("g80"))
        e.emit(interleave(main, fillers, cfg.budget, self.log))

    def tail_k(self, e):
        sts = []
        for rt in range(2):
            x, st = self.gu_frag(ACCA + rt * 16, ACCA + rt * 16 + 8, rt, S_H3, 0, d0=T + 8 + 4 * rt)
            e.emit(x); sts.append(st)
            if rt == 0:
                e.emit([WaitVM(*self.st2), Ins("s_barrier"), self.flag_store(1)])
        self.b_more(e, [(4, 1)])
        e.emit([WaitVM(*sts), Ins("s_barrier"), self.flag_store(2)])

    def b_more(self, e, lst):
        for (b, q) in lst:
            self.bquad[b] = q
            for h in range(2):
                p, d = self.dma_b(b, q, h)
                self.btok.setdefault(b, []).extend(d)
                e.emit(p + d)

    def tail_q(self, e):
        QB = T + 20
        PQ = WF
        e.emit(f"""v_and_b32 {v(T+16)}, 15, {v(LANE)}
v_lshlrev_b32 {v(T+16)}, 11, {v(T+16)}
s_lshl_b32 {s(S_T2)}, {s(S_M)}, 7
s_add_u32 {s(S_T2)}, {s(S_T2)}, {WS_FL}""")
        for rt in range(2):
            for en in range(2):
                b0 = ACCA + rt * 16 + en * 8
                e.emit([Ins(f"v_cvt_pk_bf16_f32 {v(QB+(rt*2+en)*4+i)}, {v(b0+2*i)}, {v(b0+2*i+1)}") for i in range(4)])
        for u in range(4):
            e.emit(f"v_mfma_f32_32x32x16_bf16 {v(ACCA+u*16,16)}, {v(PHI+(u&1)*4,4)}, {v(QB+u*4,4)}, 0")
        e.emit(self.softmax(ACCA, PQ, T + 12))
        e.emit([WaitVM(*self.st2), Ins("s_barrier"), self.flag_store(1)])
        pl = self.poll_issue(T + 16, R_WS, s(S_T2), 0)
        e.emit(pl)
        e.emit(self.softmax(ACCA + 16, PQ + 8, T + 12))
        e.emit(self.poll_check(pl))
        e.emit(f"""s_lshl_b32 {s(S_T0)}, {s(S_KV)}, 14
s_add_u32 {s(S_T0)}, {s(S_T0)}, {WS_KVX}
s_lshl_b32 {s(S_T1)}, {s(S_KV)}, 10
s_add_u32 {s(S_T1)}, {s(S_T1)}, {WS_KVZ}
buffer_load_dwordx4 {v(T,4)}, {v(L16)}, {s(R_WS,4)}, {s(S_T1)} offen sc1""")
        for p in range(16):
            if p and p % 4 == 0:
                e.emit(f"s_add_u32 {s(S_T0)}, {s(S_T0)}, 4096")
            e.emit(f"buffer_load_dwordx4 {v(ACCB+4*p,4)}, {v(L16)}, {s(R_WS,4)}, {s(S_T0)} offen offset:{(p&3)*1024} sc1")
        e.emit(self.softmax(ACCA + 32, PQ + 16, T + 12))
        e.emit(self.softmax(ACCA + 48, PQ + 24, T + 12))
        SEL = QB
        e.emit(f"""v_lshrrev_b32 {v(T+12)}, 5, {v(LANE)}
v_lshlrev_b32 {v(T+12)}, 2, {v(T+12)}
v_and_b32 {v(T+13)}, 31, {v(LANE)}
v_sub_u32 {v(T+12)}, {v(T+13)}, {v(T+12)}
v_and_b32 {v(T+13)}, 1, {v(T+12)}
v_lshlrev_b32 {v(T+13)}, 4, {v(T+13)}
v_mov_b32 {v(T+14)}, 0x3f80
v_lshlrev_b32 {v(T+13)}, {v(T+13)}, {v(T+14)}
v_and_b32 {v(T+12)}, -2, {v(T+12)}""")
        for jj in range(4):
            e.emit(f"v_cmp_eq_u32 vcc, {(2*jj & 3) + 8*(jj >> 1)}, {v(T+12)}\nv_cndmask_b32 {v(SEL+jj)}, 0, {v(T+13)}, vcc")
        XS = ACCA
        for p in range(16):
            e.emit(f"v_mfma_f32_32x32x16_bf16 {v(XS,16)}, {v(SEL,4)}, {v(ACCB+4*p,4)}, {'0' if p == 0 else v(XS,16)}")
            if p == 0:
                Z = T + 4
                for i in range(4):
                    e.emit(f"v_lshlrev_b32 {v(Z+2*i)}, 16, {v(T+i)}\nv_and_b32 {v(Z+2*i+1)}, 0xffff0000, {v(T+i)}")
            if 1 <= p <= 8:
                sh = (8, 4, 2, 1)[(p - 1) // 2]
                for i in range(4):
                    r = Z + ((p - 1) & 1) * 4 + i
                    e.emit(f"v_add_f32 {v(r)}, {v(r)}, {v(r)} row_ror:{sh} row_mask:0xf bank_mask:0xf")
        F = QB + 4
        e.emit([Ins(f"v_cvt_pk_bf16_f32 {v(F+4+i)}, {v(Z+2*i)}, {v(Z+2*i+1)}") for i in range(4)])
        e.emit(f"""s_lshl_b32 {s(S_T0)}, {s(S_WC)}, 12
s_add_u32 {s(S_T0)}, {s(S_T0)}, {L_FX}
v_add_u32 {v(T+12)}, {s(S_T0)}, {v(L16)}
v_lshl_add_u32 {v(T+13)}, {s(S_WR)}, 11, {v(T+12)}""")
        e.emit([Ins(f"v_cvt_pk_bf16_f32 {v(F+i)}, {v(XS+2*i)}, {v(XS+2*i+1)}") for i in range(4)])
        e.emit([Ins(f"v_permlane16_swap_b32 {v(F+i)}, {v(F+4+i)}") for i in range(4)])
        w0 = Ins(f"ds_write_b128 {v(T+13)}, {v(F,4)}")
        w1 = Ins(f"ds_write_b128 {v(T+13)}, {v(F+4,4)} offset:1024")
        e.emit([w0, w1, WaitLDS(w0, w1), Ins("s_barrier")])
        FF = T + 32
        rd = [Ins(f"ds_read_b128 {v(FF+4*i,4)}, {v(T+12)} offset:{i*1024}") for i in range(4)]
        e.emit(rd)
        for u in range(4):
            en = u & 1
            for t in range(2):
                e.emit(f"v_mfma_f32_32x32x16_bf16 {v(ACCA+u*16,16)}, {v(FF+(en*2+t)*4,4)}, {v(PQ+u*8+t*4,4)}, {'0' if t == 0 else v(ACCA+u*16,16)}")
        sts = []
        for u in range(4):
            rt, en = divmod(u, 2)
            O = ACCA + u * 16
            d0 = T + 4 * u
            e.emit(f"""v_add_f32 {v(O+8)}, {hex(f2u(1e-6))}, {v(O+8)}
v_rcp_f32 {v(O+8)}, {v(O+8)}
v_mul_f32 {v(O+8)}, {v(O+8)}, {v(GG+rt)}""")
            e.emit([Ins(f"v_mul_f32 {v(O+i)}, {v(O+i)}, {v(O+8)}") for i in range(8)])
            e.emit([Ins(f"v_cvt_pk_bf16_f32 {v(d0+i)}, {v(O+2*i)}, {v(O+2*i+1)}") for i in range(4)])
            st = Ins(f"buffer_store_dwordx4 {v(d0,4)}, {v(HV+rt)}, {s(R_WS,4)}, {s(S_H3)} offen offset:{en*2048} sc1")
            e.emit(st); sts.append(st)
        e.emit([WaitVM(*sts), Ins("s_barrier"), self.flag_store(2)])
        self.b_more(e, [(4, 1)])

    def phase2(self, typ, e):
        ACC = ACCB
        AB = [0, 32, WF]
        polls = {0: (POLL8, 1024, 0), 2: (POLL8, 0, 8), 4: (POLL8, 1024, 8), 6: (POLL4, 0, 16), 7: (POLL8, 1024, 16)}
        nxt = 5
        for b in range(0, 4):
            e.emit(WaitVM(*self.btok[b]))
            x = self.xfer_b(b, self.bquad[b])
            e.emit(x)
            e.emit(WaitLDS(*x))
            self.b_more(e, [(nxt, self.bquad[b])]); nxt += 1

        def issue_a(b):
            if b in polls:
                vo, so, im = polls[b]
                pl = self.poll_issue(vo, R_WS, s(S_PB), so + im)
                e.emit(pl)
                e.emit(self.poll_check(pl))
            p, d = self.load_a(b, AB[b % 3])
            e.emit(p + d)
        e.emit(self.stamp(5))
        issue_a(0); issue_a(1)
        for b in range(9):
            if b + 2 < 9:
                issue_a(b + 2)
            xb = b + 4
            fill = []
            if 4 <= xb < 9:
                fill = [WaitVM(*self.btok[xb])] + self.xfer_b(xb, self.bquad[xb])
            main = [Mark("s")]
            for ks in range(4):
                for cc in range(2):
                    for rt in range(2):
                        acc = ACC + (cc + 2 * rt) * 16
                        C = "0" if (b == 0 and ks == 0) else v(acc, 16)
                        main.append(Ins(f"v_mfma_f32_32x32x16_bf16 {v(acc,16)}, {a_((b%8)*32+(ks*2+cc)*4,4)}, {v(AB[b%3]+(ks*2+rt)*4,4)}, {C}"))
            main.append(Mark("e"))
            e.emit(interleave(main, [("s", "e", fill)] if fill else [], 8))
            if b == 1:
                e.emit(self.stamp(6))
            if b == 6:
                e.emit(self.stamp(7))
        e.emit(self.stamp(8))
        e.emit(f"v_add_u32 {v(T)}, {s(S_W8K)}, {v(L16)}")
        for q in range(1, 4):
            e.emit(f"v_xor_b32 {v(T+q)}, {q*8192}, {v(T)}")
        offs = {1: 0, 2: 4096, 3: 32768}
        e.emit(f"""v_and_b32 {v(T+4)}, 31, {v(LANE)}
v_lshl_add_u32 {v(T+4)}, {s(S_WR)}, 5, {v(T+4)}
v_lshlrev_b32 {v(T+4)}, 10, {v(T+4)}
v_lshrrev_b32 {v(T+5)}, 5, {v(LANE)}
v_lshl_add_u32 {v(T+4)}, {v(T+5)}, 4, {v(T+4)}
v_lshl_add_u32 {v(T+4)}, {s(S_WC)}, 6, {v(T+4)}""")
        ws_ = []
        for q in (2, 1, 3):
            for i in range(4):
                w_ = Ins(f"ds_write_b128 {v(T)}, {v(ACC+q*16+4*i,4)} offset:{offs[q]+i*1024}")
                e.emit(w_); ws_.append(w_)
        e.emit([WaitLDS(*ws_), Ins("s_barrier")])
        for i in range(4):
            for q in range(1, 4):
                e.emit(f"ds_read_b128 {v((q-1)*16+4*i,4)}, {v(T+q)} offset:{offs[q]+i*1024}")
        D = T + 8
        for i in range(4):
            for j in range(4):
                r = 4 * i + j
                e.emit(f"v_add_f32 {v(ACC+r)}, {v(ACC+r)}, {v(r)}")
            for j in range(4):
                r = 4 * i + j
                e.emit(f"v_add_f32 {v(16+r)}, {v(16+r)}, {v(32+r)}")
            for j in range(4):
                r = 4 * i + j
                e.emit(f"v_add_f32 {v(ACC+r)}, {v(ACC+r)}, {v(16+r)}")
            e.emit(f"v_cvt_pk_bf16_f32 {v(D+2*i)}, {v(ACC+4*i)}, {v(ACC+4*i+1)}\nv_cvt_pk_bf16_f32 {v(D+2*i+1)}, {v(ACC+4*i+2)}, {v(ACC+4*i+3)}")
            if i & 1:
                b0 = D + 2 * (i - 1)
                e.emit(f"v_permlane32_swap_b32 {v(b0)}, {v(b0+2)}\nv_permlane32_swap_b32 {v(b0+1)}, {v(b0+3)}")
                e.emit(f"buffer_store_dwordx4 {v(b0,4)}, {v(T+4)}, {s(R_OUT,4)}, 0 offen offset:{(i>>1)*32}")
        if self.cfg.prof:
            e.emit(self.stamp(9))
            e.emit("s_waitcnt vmcnt(0)")
            e.emit(self.stamp(10))
            e.emit(f"s_memrealtime {s(4+2*11,2)}\ns_waitcnt lgkmcnt(0)")
            for i in range(11):
                e.emit(f"s_sub_u32 {s(S_T0)}, {s(4+2*i)}, {s(S_ST0)}\nv_mov_b32 {v(i)}, {s(S_T0)}")
            e.emit(f"v_mov_b32 v11, {s(S_RT)}\nv_mov_b32 v12, {s(4+22)}\nv_mov_b32 v13, {s(S_TYPE)}\nv_mov_b32 v14, 0\nv_mov_b32 v15, 0")
            e.emit(f"""s_lshl_b32 {s(S_T0)}, s2, 2
s_add_u32 {s(S_T0)}, {s(S_T0)}, {s(S_WAVE)}
s_lshl_b32 {s(S_T0)}, {s(S_T0)}, 6
s_add_u32 {s(S_T0)}, {s(S_T0)}, {WS_PROF}
v_lshlrev_b32 v16, 24, {v(LANE)}""")
            for i in range(4):
                e.emit(f"buffer_store_dwordx4 {v(4*i,4)}, v16, {s(R_WS,4)}, {s(S_T0)} offen offset:{16*i}")
        e.emit("s_endpgm")

    def build(self):
        e0 = Emitter()
        self.prologue(e0)
        txt = e0.text()
        for typ in ("K", "Q"):
            e = e0.fork()
            if typ == "Q":
                e.emit("L_typeQ:")
            self.phase1(typ, e)
            e.emit(self.stamp(4))
            (self.tail_k if typ == "K" else self.tail_q)(e)
            self.phase2(typ, e)
            self.log.append(f"type {typ}: {e.stats}")
            txt += e.text()
        txt += "\n".join(self.slow) + "\nL_end:\n"
        kn = NAME + "_kernel"
        head = open("cdna_kernels/" + NAME + ".s.ref").read().split("; Override launch")[0] if False else ""
        return f"""; fused hedgehog linear attention + GEGLU gated mix (generated by work/gen.py)
; @launch grid=(256,1,1) block=(256,1,1) lds={LDS_BYTES}
.amdgcn_target "amdgcn-amd-amdhsa--gfx950"
.text
.globl {kn}
.p2align 8
.type {kn},@function
{kn}:
{txt}  s_endpgm
.section .rodata,"a"
.p2align 6
.amdhsa_kernel {kn}
  .amdhsa_next_free_vgpr 512
  .amdhsa_next_free_sgpr 102
  .amdhsa_accum_offset 256
  .amdhsa_group_segment_fixed_size 0
  .amdhsa_kernarg_size 96
  .amdhsa_user_sgpr_count 2
  .amdhsa_user_sgpr_kernarg_segment_ptr 1
  .amdhsa_system_sgpr_workgroup_id_x 1
.end_amdhsa_kernel
"""


if __name__ == "__main__":
    cfg = Cfg()
    out = sys.argv[1]
    for kv in sys.argv[2:]:
        k, val = kv.split("=")
        cur = getattr(cfg, k)
        setattr(cfg, k, val if isinstance(cur, str) else type(cur)(int(val)))
    g = Gen(cfg)
    open(out, "w").write(g.build())
    print("\n".join(g.log))
```

```python
import sys, struct, math
from fw import *

NAME = "gated_mix__linear_kernel_hedgehog__glu_gated_geglu__prompt"


def f2u(x):
    return struct.unpack("<I", struct.pack("<f", x))[0]


LOG2E = 1.4426950408889634
K1 = -2.0 * math.sqrt(2.0 / math.pi) * LOG2E
K2 = K1 * 0.044715

WS_H = 0
WS_KVX = 0xA00000
WS_KVZ = 0xA80000
WS_FL = 0xA90000
WS_PROF = 0xB00000
WS_SIZE = 0xC00000
OOB = 0x7FFFFF00

L_W = 0
L_X = 65536
L_PK = 65536
L_PV = 98304
L_CG = 115712
L_CZ = L_CG + 1024
L_CP = L_CG + 2048
L_GX = L_CG + 4096
L_FX = 32768
LDS_BYTES = 163840

P_X, P_WQKV, P_WPHI, P_WO, P_BX, P_WG, P_WU, P_WD, P_GW, P_OUT, P_DBG, P_WS = range(4, 28, 2)
R_X, R_W, R_WS, R_WD, R_WO, R_OUT, R_DBG = 28, 32, 36, 40, 44, 48, 52
S_RT = 56
S_WAVE, S_WR, S_WC, S_M, S_RB, S_ROT = 58, 59, 60, 61, 62, 63
S_CH = 64
S_CH3 = 72
S_W4K, S_W8K, S_TX, S_TW = 76, 77, 78, 79
S_W2B, S_W2N, S_W3B, S_W3N = 80, 82, 84, 86
S_TYPE = 83
S_H1, S_H2, S_H3 = 87, 88, 89
S_L0, S_L1, S_L4 = 90, 91, 92
S_AB, S_PB = 93, 94
S_T0, S_T1, S_T2 = 95, 96, 97
S_SPIN = 98
S_KV = 99
S_ST0 = 100

ACCA, ACCB = 0, 64
WF = 128
GF = 144
GA = 152
XA = 156
XV = 164
WV = 168
WA, WA3, GAD = 172, 173, 174
LANE = 175
NONCE = 176
PF = 178
POLL8, POLL4, FLOFF = 180, 181, 182
L16 = 183
C1 = 184
GG = 186
HV = 188
AV = 190
PHI = 192
BA = 200
VK1 = 206
VL2E = 207
T = 208


def v(a, n=1):
    return f"v{a}" if n == 1 else f"v[{a}:{a+n-1}]"


def a_(a, n=1):
    return f"a{a}" if n == 1 else f"a[{a}:{a+n-1}]"


def s(a, n=1):
    return f"s{a}" if n == 1 else f"s[{a}:{a+n-1}]"


class Cfg:
    prof = False
    rotmode = 2
    budget = 24
    dma_flags = ""
    spin_limit = 1 << 14
    padto = 0
    padcyc = 0


class Gen:
    def __init__(self, cfg):
        self.cfg = cfg
        self.slow = []
        self.nlab = 0
        self.log = []

    def stamp(self, i):
        if not self.cfg.prof:
            return []
        return [Ins(f"s_memtime {s(4+2*i,2)}", cost=4)]

    def poll_issue(self, voff, srd, soff, imm):
        txt = f"buffer_load_dwordx2 {v(PF,2)}, {v(voff)}, {s(srd,4)}, {soff} offen offset:{imm} sc1"
        return Ins(txt)

    def poll_check(self, ld):
        n = self.nlab; self.nlab += 1
        self.slow.append(f"""L_slow{n}:
  s_mov_b32 {s(S_SPIN)}, 0
L_slow{n}_l:
  s_add_u32 {s(S_SPIN)}, {s(S_SPIN)}, 1
  s_cmp_gt_u32 {s(S_SPIN)}, {self.cfg.spin_limit}
  s_cbranch_scc1 L_ret{n}
  {ld.text}
  s_waitcnt vmcnt(0)
  v_cmp_ne_u64 vcc, {v(PF,2)}, {v(NONCE,2)}
  s_cbranch_vccnz L_slow{n}_l
  s_branch L_ret{n}""")
        return [Ins(f"v_cmp_ne_u64 vcc, {v(PF,2)}, {v(NONCE,2)}"),
                Ins(f"s_cbranch_vccnz L_slow{n}", glue=True), Raw(f"L_ret{n}:", glue=True)]

    def nonce_issue(self):
        return Ins(f"buffer_load_dwordx2 {v(NONCE,2)}, off, {s(R_DBG,4)}, 0 sc1")

    def nonce_check(self, ld):
        n = self.nlab; self.nlab += 1
        self.slow.append(f"""L_slow{n}:
  s_mov_b32 {s(S_SPIN)}, 0
L_slow{n}_l:
  s_add_u32 {s(S_SPIN)}, {s(S_SPIN)}, 1
  s_cmp_gt_u32 {s(S_SPIN)}, {self.cfg.spin_limit}
  s_cbranch_scc1 L_ret{n}
  {ld.text}
  s_waitcnt vmcnt(0)
  v_min_u32 {v(PF)}, {v(NONCE)}, {v(NONCE+1)}
  v_cmp_eq_u32 vcc, 0, {v(PF)}
  s_cbranch_vccnz L_slow{n}_l
  s_branch L_ret{n}""")
        return [Ins(f"v_min_u32 {v(PF)}, {v(NONCE)}, {v(NONCE+1)}"), Ins(f"v_cmp_eq_u32 vcc, 0, {v(PF)}", glue=True),
                Ins(f"s_cbranch_vccnz L_slow{n}", glue=True), Raw(f"L_ret{n}:", glue=True)]

    def flag_store(self, idx):
        return Ins(f"buffer_store_dwordx2 {v(NONCE,2)}, {v(FLOFF)}, {s(R_WS,4)}, 0 offen offset:{idx*8} sc1")

    def dma_x(self, c):
        out = I(f"s_add_u32 m0, {s(S_W4K)}, {L_X + (c % 3) * 16384}\ns_lshl_b32 {s(S_TX)}, {s(S_CH + c)}, 7")
        d = [Ins(f"buffer_load_dwordx4 {v(XV+j)}, {s(R_X,4)}, {s(S_TX)} offen offset:{j*1024} {self.cfg.dma_flags} lds") for j in range(4)]
        return out, d

    def dma_w(self, typ, c):
        if c < 16:
            rs = 3072 if (typ == "K" and c < 8) else 3584
            ch = S_CH + (c % 8)
        else:
            rs = 3584 if typ == "K" else 3072
            ch = S_CH3 + (c - 16)
        pre = []
        if c == 8:
            pre += I(f"s_mov_b32 {s(R_W)}, {s(S_W2B)}\ns_mov_b32 {s(R_W+1)}, {s(S_W2B+1)}\ns_mov_b32 {s(R_W+2)}, {s(S_W2N)}")
            if typ == "K":
                pre += self.wv_full(3584)
        if c == 16:
            pre += I(f"s_mov_b32 {s(R_W)}, {s(S_W3B)}\ns_mov_b32 {s(R_W+1)}, {s(S_W3B+1)}\ns_mov_b32 {s(R_W+2)}, {s(S_W3N)}")
            pre += self.wv_half() if typ == "K" else self.wv_full(3072)
        pre += I(f"s_add_u32 m0, {s(S_W4K)}, {L_W + (c % 4) * 16384}\ns_mul_i32 {s(S_TW)}, {s(ch)}, {64*rs}")
        d = [Ins(f"buffer_load_dwordx4 {v(WV+j)}, {s(R_W,4)}, {s(S_TW)} offen offset:{j*1024} {self.cfg.dma_flags} lds") for j in range(4)]
        return pre, d

    def wv_full(self, rs):
        o = I(f"""v_lshrrev_b32 {v(WV+1)}, 3, {v(LANE)}
v_lshl_add_u32 {v(WV+1)}, {s(S_WC)}, 5, {v(WV+1)}
v_mul_u32_u24 {v(WV+1)}, {rs}, {v(WV+1)}
v_lshrrev_b32 {v(WV+2)}, 2, {v(LANE)}
v_and_b32 {v(WV+2)}, 4, {v(WV+2)}
v_and_b32 {v(WV+3)}, 7, {v(LANE)}
v_xor_b32 {v(WV+2)}, {v(WV+2)}, {v(WV+3)}
v_lshl_add_u32 {v(WV)}, {v(WV+2)}, 4, {v(WV+1)}""")
        for j in range(1, 4):
            o += I(f"v_add_u32 {v(WV+j)}, {j*(8*rs-1024)}, {v(WV)}")
        return o

    def wv_half(self):
        o = I(f"""v_lshrrev_b32 {v(WV+1)}, 2, {v(LANE)}
v_mul_u32_u24 {v(WV+1)}, 3584, {v(WV+1)}
v_and_b32 {v(WV+2)}, 3, {v(LANE)}
v_lshlrev_b32 {v(WV+3)}, 1, {s(S_WR)}
v_xor_b32 {v(WV+2)}, {v(WV+2)}, {v(WV+3)}
v_lshl_add_u32 {v(WV)}, {v(WV+2)}, 4, {v(WV+1)}""")
        for j in range(1, 4):
            o += I(f"v_add_u32 {v(WV+j)}, {j*(16*3584-1024)}, {v(WV)}")
        return o

    def bv_setup(self):
        o = I(f"""v_lshrrev_b32 {v(XV+1)}, 3, {v(LANE)}
v_lshlrev_b32 {v(XV+1)}, 10, {v(XV+1)}
v_lshrrev_b32 {v(XV+2)}, 2, {v(LANE)}
v_and_b32 {v(XV+2)}, 4, {v(XV+2)}
v_and_b32 {v(XV+3)}, 7, {v(LANE)}
v_xor_b32 {v(XV+2)}, {v(XV+2)}, {v(XV+3)}
v_lshl_add_u32 {v(XV)}, {v(XV+2)}, 4, {v(XV+1)}""")
        for j in range(1, 4):
            o += I(f"v_add_u32 {v(XV+j)}, {j*(8*1024-1024)}, {v(XV)}")
        return o

    BLK = [(12, S_L0), (12, S_L1), (0, S_L0), (0, S_L1), (20, S_L0), (20, S_L1), (8, S_L4), (28, S_L0), (28, S_L1)]

    def dma_b(self, b, quad, half):
        base, sl = self.BLK[b]
        srd = R_WD
        if base == 28:
            srd, base = R_WO, 0
        pre = I(f"""s_add_u32 m0, {s(S_W8K)}, {quad*32768 + half*4096}
s_lshl_b32 {s(S_TX)}, {s(sl)}, 16
s_add_u32 {s(S_TX)}, {s(S_TX)}, {base*65536 + half*32768}""")
        d = [Ins(f"buffer_load_dwordx4 {v(XV+j)}, {s(srd,4)}, {s(S_TX)} offen offset:{j*1024} {self.cfg.dma_flags} lds") for j in range(4)]
        return pre, d

    def xfer_b(self, b, quad):
        o = []
        areg = (b % 8) * 32
        for ks in range(4):
            for cc in range(2):
                for h in range(2):
                    ad = BA + 2 * (quad // 2) + cc
                    off = (quad % 2) * 32768 + ks * 2048 + h * 1024
                    r = areg + (ks * 2 + cc) * 4 + h * 2
                    o.append(Ins(f"ds_read_b64_tr_b16 {a_(r,2)}, {v(ad)} offset:{off}"))
        return o

    def load_a(self, b, dst):
        base, sl = self.BLK[b]
        pre = I(f"""s_lshl_b32 {s(S_T0)}, {s(sl)}, 13
s_add_u32 {s(S_T0)}, {s(S_T0)}, {s(S_AB)}
s_add_u32 {s(S_T0)}, {s(S_T0)}, {base*8192}
s_add_u32 {s(S_T1)}, {s(S_T0)}, 4096""")
        d = []
        for ks in range(4):
            for rt in range(2):
                r = dst + (ks * 2 + rt) * 4
                d.append(Ins(f"buffer_load_dwordx4 {v(r,4)}, {v(AV+rt)}, {s(R_WS,4)}, {s(S_T0 + ks//2)} offen offset:{(ks&1)*2048} sc1"))
        return pre, d

    def gu_frag(self, g, u, rt, soff, imm, t0=T, d0=T + 8):
        o = []
        c = v(C1 + rt)
        R = range(8)
        o += [Ins(f"v_mul_f32 {v(t0+i)}, {v(g+i)}, {v(g+i)}") for i in R]
        o += [Ins(f"v_fmamk_f32 {v(t0+i)}, {v(t0+i)}, {hex(f2u(K2))}, {v(VK1)}") for i in R]
        o += [Ins(f"v_mul_f32 {v(t0+i)}, {v(t0+i)}, {v(g+i)}") for i in R]
        for i in R:
            o.append(Ins(f"v_exp_f32 {v(t0+i)}, {v(t0+i)}"))
            o.append(Ins(f"v_mul_f32 {v(u+i)}, {v(g+i)}, {v(u+i)}"))
        for i in range(9):
            if i < 8:
                o.append(Ins(f"v_fma_f32 {v(t0+i)}, {v(t0+i)}, {c}, {c}"))
            if i > 0:
                o.append(Ins(f"v_rcp_f32 {v(t0+i-1)}, {v(t0+i-1)}"))
        o += [Ins(f"v_mul_f32 {v(u+i)}, {v(u+i)}, {v(t0+i)}") for i in R]
        o += [Ins(f"v_cvt_pk_bf16_f32 {v(d0+i)}, {v(u+2*i)}, {v(u+2*i+1)}") for i in range(4)]
        st = Ins(f"buffer_store_dwordx4 {v(d0,4)}, {v(HV+rt)}, {s(R_WS,4)}, {s(soff)} offen offset:{imm} sc1")
        o.append(st)
        return o, st

    def gu_full(self, acc, soff, rts=(0, 1)):
        o, sts = [], []
        k = 0
        for rt in rts:
            for t in range(2):
                x, st = self.gu_frag(acc + rt * 16 + t * 8, acc + 32 + rt * 16 + t * 8, rt, soff, t * 2048, d0=T + 8 + 4 * (k & 1))
                o += x; sts.append(st); k += 1
        return o, sts

    def softmax(self, P, D, t0):
        o = []
        a, b = t0, t0 + 1
        o.append(Ins(f"v_max3_f32 {v(a)}, {v(P)}, {v(P+1)}, {v(P+2)}"))
        o.append(Ins(f"v_max3_f32 {v(b)}, {v(P+8)}, {v(P+9)}, {v(P+10)}"))
        o.append(Ins(f"v_max3_f32 {v(a)}, {v(a)}, {v(P+3)}, {v(P+4)}"))
        o.append(Ins(f"v_max3_f32 {v(b)}, {v(b)}, {v(P+11)}, {v(P+12)}"))
        o.append(Ins(f"v_max3_f32 {v(a)}, {v(a)}, {v(P+5)}, {v(P+6)}"))
        o.append(Ins(f"v_max3_f32 {v(b)}, {v(b)}, {v(P+13)}, {v(P+14)}"))
        o.append(Ins(f"v_max3_f32 {v(a)}, {v(a)}, {v(P+7)}, {v(P+15)}"))
        o.append(Ins(f"v_max_f32 {v(a)}, {v(a)}, {v(b)}"))
        o.append(Ins(f"v_mul_f32 {v(a)}, {hex(f2u(-LOG2E))}, {v(a)}"))
        for i in range(19):
            if i < 16:
                o.append(Ins(f"v_fma_f32 {v(P+i)}, {v(P+i)}, {v(VL2E)}, {v(a)}"))
            if 1 <= i < 17:
                o.append(Ins(f"v_exp_f32 {v(P+i-1)}, {v(P+i-1)}"))
            j = i - 3
            if j == 1:
                o.append(Ins(f"v_add_f32 {v(b)}, {v(P)}, {v(P+1)}"))
            elif j > 1:
                o.append(Ins(f"v_add_f32 {v(b)}, {v(b)}, {v(P+j)}"))
        o.append(Ins(f"v_rcp_f32 {v(b)}, {v(b)}"))
        for i in range(16):
            o.append(Ins(f"v_mul_f32 {v(P+i)}, {v(P+i)}, {v(b)}"))
        for i in range(8):
            o.append(Ins(f"v_cvt_pk_bf16_f32 {v(D+i)}, {v(P+2*i)}, {v(P+2*i+1)}"))
        return o

    def gate_consts(self, src, rt):
        t = T + 16
        return I(f"""v_mul_f32 {v(t)}, {v(VL2E)}, {v(src)}
v_exp_f32 {v(C1+rt)}, {v(t)}
v_exp_f32 {v(GG+rt)}, -{v(t)}
v_add_f32 {v(C1+rt)}, 1.0, {v(C1+rt)}
v_add_f32 {v(GG+rt)}, 1.0, {v(GG+rt)}
v_min_f32 {v(C1+rt)}, {hex(f2u(2.0**100))}, {v(C1+rt)}
v_rcp_f32 {v(GG+rt)}, {v(GG+rt)}""")

    def prologue(self, e):
        cfg = self.cfg
        e.emit(f"""s_cmp_ge_u32 s2, 256
s_cbranch_scc1 L_end
s_load_dwordx16 s[4:19], s[0:1], 0
s_load_dwordx8 s[20:27], s[0:1], 64
s_memrealtime {s(S_RT,2)}""")
        if cfg.prof or cfg.padcyc:
            e.emit(f"s_memtime {s(S_ST0,2)}")
        e.emit(f"""v_lshrrev_b32 v1, 6, v0
v_and_b32 {v(LANE)}, 63, v0
v_readfirstlane_b32 {s(S_WAVE)}, v1
s_and_b32 {s(S_T0)}, s2, 7
s_lshr_b32 {s(S_T1)}, s2, 3
s_lshr_b32 {s(S_RB)}, {s(S_T0)}, 2
s_lshl_b32 {s(S_RB)}, {s(S_RB)}, 3
s_and_b32 {s(S_T2)}, {s(S_T1)}, 7
s_add_u32 {s(S_RB)}, {s(S_RB)}, {s(S_T2)}
s_lshr_b32 {s(S_T1)}, {s(S_T1)}, 3
s_lshr_b32 {s(S_TYPE)}, {s(S_T1)}, 1
s_and_b32 {s(S_M)}, {s(S_T0)}, 3
s_lshl_b32 {s(S_M)}, {s(S_M)}, 1
s_and_b32 {s(S_TX)}, {s(S_T1)}, 1
s_add_u32 {s(S_M)}, {s(S_M)}, {s(S_TX)}""")
        if cfg.rotmode == 0:
            e.emit(f"s_mov_b32 {s(S_ROT)}, 0")
        elif cfg.rotmode == 1:
            e.emit(f"s_add_u32 {s(S_ROT)}, {s(S_T1)}, {s(S_T2)}\ns_and_b32 {s(S_ROT)}, {s(S_ROT)}, 1\ns_lshl_b32 {s(S_ROT)}, {s(S_ROT)}, 2")
        elif cfg.rotmode == 3:
            e.emit(f"s_add_u32 {s(S_ROT)}, {s(S_T1)}, {s(S_T2)}\ns_and_b32 {s(S_ROT)}, {s(S_ROT)}, 3\ns_lshl_b32 {s(S_ROT)}, {s(S_ROT)}, 1")
        else:
            e.emit(f"s_lshl_b32 {s(S_ROT)}, {s(S_T1)}, 1\ns_add_u32 {s(S_ROT)}, {s(S_ROT)}, {s(S_T2)}\ns_and_b32 {s(S_ROT)}, {s(S_ROT)}, 7")
        e.emit(f"""s_lshr_b32 {s(S_WR)}, {s(S_WAVE)}, 1
s_and_b32 {s(S_WC)}, {s(S_WAVE)}, 1
s_lshl_b32 {s(S_W4K)}, {s(S_WAVE)}, 12
s_lshl_b32 {s(S_W8K)}, {s(S_WAVE)}, 13
s_mov_b32 {s(S_CH)}, {s(S_ROT)}
s_add_u32 {s(S_CH+1)}, {s(S_ROT)}, 1
s_and_b32 {s(S_CH+1)}, {s(S_CH+1)}, 7""")
        e.emit(f"""v_lshrrev_b32 v2, 3, {v(LANE)}
v_lshl_add_u32 v2, {s(S_WAVE)}, 5, v2
v_lshlrev_b32 v2, 10, v2
v_lshrrev_b32 v3, 4, {v(LANE)}
v_and_b32 v4, 7, {v(LANE)}
v_xor_b32 v3, v3, v4
v_lshl_add_u32 {v(XV)}, v3, 4, v2
v_xor_b32 v5, 64, {v(XV)}
v_add_u32 {v(XV+1)}, {8192-1024}, v5
v_add_u32 {v(XV+2)}, {2*(8192-1024)}, {v(XV)}
v_add_u32 {v(XV+3)}, {3*(8192-1024)}, v5
v_lshlrev_b32 {v(L16)}, 4, {v(LANE)}""")
        e.emit(f"""s_lshl_b32 {s(S_TX)}, {s(S_RB)}, 17
s_mov_b32 {s(R_X+2)}, 0x20000
s_mov_b32 {s(R_X+3)}, 0x20000
s_mov_b32 {s(R_W+3)}, 0x20000
s_add_u32 {s(R_X)}, {s(P_X)}, {s(S_TX)}
s_addc_u32 {s(R_X+1)}, {s(P_X+1)}, 0
s_cmp_eq_u32 {s(S_TYPE)}, 1
s_cbranch_scc1 L_typeQ""")

    def setup1(self, typ):
        o = []
        if typ == "K":
            o += I(f"""s_lshl_b32 {s(S_TX)}, {s(S_M)}, 7
s_lshl_b32 {s(S_TW)}, {s(S_WR)}, 10
s_add_u32 {s(S_TX)}, {s(S_TX)}, {s(S_TW)}
s_add_u32 {s(S_TX)}, {s(S_TX)}, 1024
s_add_u32 {s(R_W)}, {s(P_WQKV)}, {s(S_TX)}
s_addc_u32 {s(R_W+1)}, {s(P_WQKV+1)}, 0
s_sub_u32 {s(R_W+2)}, {512*3072}, {s(S_TX)}""")
            o += self.wv_full(3072)
        else:
            o += I(f"""s_cmp_eq_u32 {s(S_WR)}, 0
s_cselect_b32 {s(R_W)}, {s(P_WG)}, {s(P_WU)}
s_cselect_b32 {s(R_W+1)}, {s(P_WG+1)}, {s(P_WU+1)}
s_lshl_b32 {s(S_TX)}, {s(S_M)}, 7
s_add_u32 {s(S_TX)}, {s(S_TX)}, {12*128}
s_add_u32 {s(R_W)}, {s(R_W)}, {s(S_TX)}
s_addc_u32 {s(R_W+1)}, {s(R_W+1)}, 0
s_sub_u32 {s(R_W+2)}, {512*3584}, {s(S_TX)}""")
            o += self.wv_full(3584)
        return o

    def setup2(self, typ):
        o = []
        A = lambda t: o.extend(I(t))
        A(f"""s_lshl_b32 {s(S_TX)}, {s(S_ROT)}, 7
v_add_u32 v1, {s(S_TX)}, {v(L16)}
v_and_b32 v1, 1023, v1
s_lshl_b32 {s(S_TX)}, {s(S_M)}, 11
s_lshl_b32 {s(S_TW)}, {s(S_WR)}, 10
s_add_u32 {s(S_TX)}, {s(S_TX)}, {s(S_TW)}
v_add_u32 v2, {s(S_TX)}, {v(L16)}
s_add_u32 {s(S_TW)}, {s(S_TW)}, {L_CP}
s_cmp_eq_u32 {s(S_WR)}, {s(S_WC)}
s_cselect_b64 vcc, -1, 0
s_cselect_b32 {s(P_BX)}, {s(P_GW)}, {s(P_WPHI)}
s_cselect_b32 {s(P_BX+1)}, {s(P_GW+1)}, {s(P_WPHI+1)}
s_cselect_b32 m0, {L_CG}, {s(S_TW)}
v_cndmask_b32 v1, v2, v1, vcc""")
        self.cdma = Ins(f"global_load_lds_dwordx4 v1, {s(P_BX,2)}")
        o.append(self.cdma)
        A(f"""s_mov_b32 {s(R_WS)}, {s(P_WS)}
s_mov_b32 {s(R_WS+1)}, {s(P_WS+1)}
s_mov_b32 {s(R_WS+2)}, {WS_SIZE}
s_mov_b32 {s(R_WS+3)}, 0x20000
s_mov_b32 {s(R_DBG)}, {s(P_DBG)}
s_mov_b32 {s(R_DBG+1)}, {s(P_DBG+1)}
s_mov_b32 {s(R_DBG+2)}, 256
s_mov_b32 {s(R_DBG+3)}, 0x20000""")
        A(f"""s_or_b32 {s(S_RT)}, {s(S_RT)}, 1
s_or_b32 {s(S_RT+1)}, {s(S_RT+1)}, 0x80000000
v_mov_b32 v4, {s(S_RT)}
v_mov_b32 v5, {s(S_RT+1)}
v_lshl_add_u32 v3, s2, 8, v0
v_lshlrev_b32 v3, 8, v3
buffer_store_dwordx2 v[4:5], v3, {s(R_DBG,4)}, 0 offen sc1""")
        A(f"""v_mov_b32 v6, 0
v_lshlrev_b32 v7, 2, v0
v_add_u32 v7, {L_CZ}, v7""")
        self.zw = Ins("ds_write_b32 v7, v6")
        o.append(self.zw)
        A(f"""s_lshl_b32 {s(S_TX)}, {s(S_RB)}, 4
s_add_u32 {s(S_TX)}, {s(S_TX)}, {s(S_M)}
s_lshl_b32 {s(S_TX)}, {s(S_TX)}, 7
s_add_u32 {s(S_TX)}, {s(S_TX)}, {WS_FL + (1024 if typ == 'Q' else 0)}
v_mov_b32 v8, {OOB}
v_mov_b32 v9, {s(S_TX)}
v_cmp_eq_u32 vcc, 0, v0
v_mov_b32 {v(VK1)}, {hex(f2u(K1))}
v_mov_b32 {v(VL2E)}, {hex(f2u(LOG2E))}
v_cndmask_b32 {v(FLOFF)}, v8, v9, vcc""")
        for i in range(2, 8):
            A(f"s_add_u32 {s(S_CH+i)}, {s(S_ROT)}, {i}\ns_and_b32 {s(S_CH+i)}, {s(S_CH+i)}, 7")
        A(f"s_cmp_eq_u32 {s(S_WC if typ == 'K' else S_WR)}, 0")
        for i in range(4):
            A(f"s_cselect_b32 {s(S_CH3+i)}, {s(S_CH+2*i)}, {s(S_CH+2*i+1)}")
        A(f"""v_lshrrev_b32 v10, 5, {v(LANE)}
v_bfe_u32 v11, {v(LANE)}, 4, 1
v_bfe_u32 v12, {v(LANE)}, 2, 2
v_and_b32 v13, 3, {v(LANE)}
v_and_b32 v14, 31, {v(LANE)}""")
        A(f"""v_bfe_u32 v15, {v(LANE)}, 1, 3
v_xor_b32 v15, v15, v10
v_lshlrev_b32 v15, 4, v15
v_lshl_add_u32 v15, v14, 7, v15
s_lshl_b32 {s(S_TX)}, {s(S_WAVE)}, 12
s_add_u32 {s(S_TX)}, {s(S_TX)}, {L_X}
v_add_u32 {v(XA)}, {s(S_TX)}, v15""")
        for ks in range(4):
            for rt in range(2):
                if ks or rt:
                    A(f"v_xor_b32 {v(XA+ks*2+rt)}, {ks*32 + rt*4096}, {v(XA)}")
        A(f"""v_lshlrev_b32 v16, 3, v13
v_lshl_add_u32 v16, v11, 5, v16
v_lshrrev_b32 v17, 1, v12
v_xor_b32 v17, {s(S_WC)}, v17
v_lshl_add_u32 v17, v17, 6, v16
v_lshl_add_u32 v18, v10, 3, v12
v_lshl_add_u32 {v(WA)}, v18, 7, v17""")
        if typ == "K":
            A(f"""v_xor_b32 v19, {s(S_WC)}, v11
v_lshlrev_b32 v19, 5, v19
v_lshl_add_u32 v19, v13, 3, v19
v_lshl_add_u32 v19, v18, 6, v19
v_lshl_add_u32 {v(WA3)}, v11, 13, v19""")
        A(f"""v_lshl_add_u32 v18, v10, 2, v12
v_lshl_add_u32 v19, v18, 7, v17
v_add_u32 {v(BA)}, {s(S_W8K)}, v19
v_xor_b32 {v(BA+1)}, 64, {v(BA)}
v_add_u32 {v(BA+2)}, 0x10000, {v(BA)}
v_add_u32 {v(BA+3)}, 0x10000, {v(BA+1)}
v_add_u32 {v(BA+4)}, 0x20000, {v(BA)}
v_add_u32 {v(BA+5)}, 0x20000, {v(BA+1)}""")
        A(f"""v_lshrrev_b32 v19, 1, v13
v_lshl_add_u32 v19, v11, 1, v19
v_lshlrev_b32 v19, 3, v19
v_lshl_add_u32 v19, v18, 5, v19
s_lshl_b32 {s(S_TX)}, {s(S_WC)}, 10
s_add_u32 {s(S_TX)}, {s(S_TX)}, {L_CP}
v_add_u32 {v(T)}, {s(S_TX)}, v19
v_and_b32 v19, 1, v12
v_mul_u32_u24 v19, 0x8000, v19
v_lshl_or_b32 {v(T+1)}, v19, 16, v19""")
        A(f"""v_xor_b32 v19, v12, v11
v_and_b32 v19, 1, v19
v_lshlrev_b32 v19, 10, v19
v_lshl_add_u32 v19, v10, 4, v19
v_add_u32 {v(GAD)}, {L_CG}, v19""")
        A(f"""v_lshl_add_u32 {v(HV)}, {s(S_WC)}, 10, {v(L16)}
v_xor_b32 {v(HV+1)}, 1024, {v(HV)}
v_lshl_add_u32 {v(AV)}, {s(S_WR)}, 10, {v(L16)}
v_xor_b32 {v(AV+1)}, 1024, {v(AV)}""")
        l2 = 0 if typ == "K" else 20
        A(f"""s_cmp_eq_u32 {s(S_WR)}, 0
s_cselect_b32 {s(S_W3B)}, {s(P_WG)}, {s(P_WU)}
s_cselect_b32 {s(S_W3B+1)}, {s(P_WG+1)}, {s(P_WU+1)}
s_lshl_b32 {s(S_TX)}, {s(S_M)}, 7
s_add_u32 {s(S_TW)}, {s(S_TX)}, {l2*128}
s_add_u32 {s(S_W2B)}, {s(S_W3B)}, {s(S_TW)}
s_addc_u32 {s(S_W2B+1)}, {s(S_W3B+1)}, 0
s_sub_u32 {s(S_W2N)}, {512*3584}, {s(S_TW)}""")
        if typ == "K":
            A(f"""s_lshl_b32 {s(S_TW)}, {s(S_M)}, 6
s_add_u32 {s(S_TW)}, {s(S_TW)}, {8*128}
s_add_u32 {s(S_W3B)}, {s(S_W3B)}, {s(S_TW)}
s_addc_u32 {s(S_W3B+1)}, {s(S_W3B+1)}, 0
s_sub_u32 {s(S_W3N)}, {512*3584}, {s(S_TW)}""")
        else:
            A(f"""s_add_u32 {s(S_W3B)}, {s(P_WQKV)}, {s(S_TX)}
s_addc_u32 {s(S_W3B+1)}, {s(P_WQKV+1)}, 0
s_sub_u32 {s(S_W3N)}, {512*3072}, {s(S_TX)}""")
        A(f"""s_lshl_b32 {s(S_TX)}, {s(S_RB)}, 1
s_add_u32 {s(S_TX)}, {s(S_TX)}, {s(S_WR)}
s_mul_i32 {s(S_TX)}, {s(S_TX)}, {36*8192}
s_lshl_b32 {s(S_TW)}, {s(S_M)}, 13
s_lshl_b32 {s(S_KV)}, {s(S_WC)}, 12
s_add_u32 {s(S_TW)}, {s(S_TW)}, {s(S_KV)}
s_add_u32 {s(S_TW)}, {s(S_TW)}, {s(S_TX)}""")
        if typ == "K":
            A(f"""s_mov_b32 {s(S_H2)}, {s(S_TW)}
s_lshl_b32 {s(S_TW)}, {s(S_M)}, 12
s_lshl_b32 {s(S_KV)}, {s(S_WC)}, 11
s_add_u32 {s(S_TW)}, {s(S_TW)}, {s(S_KV)}
s_add_u32 {s(S_TW)}, {s(S_TW)}, {s(S_TX)}
s_add_u32 {s(S_H3)}, {s(S_TW)}, {8*8192}""")
        else:
            A(f"""s_add_u32 {s(S_H1)}, {s(S_TW)}, {12*8192}
s_add_u32 {s(S_H2)}, {s(S_TW)}, {20*8192}
s_add_u32 {s(S_H3)}, {s(S_TW)}, {28*8192}""")
        A(f"""s_lshl_b32 {s(S_KV)}, {s(S_M)}, 2
s_lshl_b32 {s(S_TW)}, {s(S_WC)}, 1
s_add_u32 {s(S_KV)}, {s(S_KV)}, {s(S_TW)}
s_add_u32 {s(S_KV)}, {s(S_KV)}, {s(S_WR)}""")
        A(f"""s_lshl_b32 {s(S_TX)}, {s(S_T0)}, 2
s_add_u32 {s(S_TX)}, {s(S_TX)}, {s(S_T1)}
s_mul_i32 {s(S_AB)}, {s(S_TX)}, {36*8192}
s_lshr_b32 {s(S_PB)}, {s(S_TX)}, 1
s_lshl_b32 {s(S_PB)}, {s(S_PB)}, 11
s_add_u32 {s(S_PB)}, {s(S_PB)}, {WS_FL}
s_lshl_b32 {s(S_TW)}, {s(S_T2)}, 7
s_add_u32 {s(R_WD)}, {s(P_WD)}, {s(S_TW)}
s_addc_u32 {s(R_WD+1)}, {s(P_WD+1)}, 0
s_sub_u32 {s(R_WD+2)}, {1792*1024}, {s(S_TW)}
s_mov_b32 {s(R_WD+3)}, 0x20000
s_add_u32 {s(R_WO)}, {s(P_WO)}, {s(S_TW)}
s_addc_u32 {s(R_WO+1)}, {s(P_WO+1)}, 0
s_sub_u32 {s(R_WO+2)}, {512*1024}, {s(S_TW)}
s_mov_b32 {s(R_WO+3)}, 0x20000
s_lshl_b32 {s(S_TX)}, {s(S_TX)}, 16
s_add_u32 {s(S_TX)}, {s(S_TX)}, {s(S_TW)}
s_add_u32 {s(R_OUT)}, {s(P_OUT)}, {s(S_TX)}
s_addc_u32 {s(R_OUT+1)}, {s(P_OUT+1)}, 0
s_sub_u32 {s(R_OUT+2)}, {2048*1024}, {s(S_TX)}
s_mov_b32 {s(R_OUT+3)}, 0x20000
s_add_u32 {s(S_TW)}, {s(S_T1)}, {s(S_T2)}
s_lshl_b32 {s(S_L0)}, {s(S_WAVE)}, 1
s_add_u32 {s(S_L0)}, {s(S_L0)}, {s(S_TW)}
s_add_u32 {s(S_L1)}, {s(S_L0)}, 1
s_add_u32 {s(S_L4)}, {s(S_WAVE)}, {s(S_TW)}
v_and_b32 v19, 1, {v(LANE)}
v_add_u32 v20, {s(S_L0)}, v19
v_and_b32 v20, 7, v20
v_lshlrev_b32 {v(POLL8)}, 7, v20
s_and_b32 {s(S_L0)}, {s(S_L0)}, 7
s_and_b32 {s(S_L1)}, {s(S_L1)}, 7
s_and_b32 {s(S_L4)}, {s(S_L4)}, 3
v_lshl_add_u32 v20, {s(S_L4)}, 1, v19
v_lshlrev_b32 {v(POLL4)}, 7, v20""")
        return o

    def frag_reads(self, typ, G):
        c, gi = divmod(G, 4)
        F = WF + (G & 1) * 8
        slot = L_W + (c % 4) * 16384
        o = []
        for tile in range(2):
            for h in range(2):
                if c < 16:
                    ad, off = WA, slot + tile * 8192 + gi * 2048 + h * 512
                elif typ == "Q":
                    ad, off = WA, slot + (2 * gi + tile) * 2048 + h * 512
                else:
                    ad, off = WA3, slot + (2 * gi + tile) * 1024 + h * 256
                o.append(Ins(f"ds_read_b64_tr_b16 {v(F+tile*4+h*2,2)}, {v(ad)} offset:{off}"))
        return o

    def x_reads(self, G):
        c, gi = divmod(G, 4)
        o = [Ins(f"ds_read_b128 {a_((G*2+rt)*4,4)}, {v(XA+gi*2+rt)} offset:{(c%3)*16384}") for rt in range(2)]
        o.append(Ins(f"ds_read_b128 {v(GF+(G&1)*4,4)}, {v(GAD)} offset:{G*32}"))
        return o

    def mfmas(self, typ, G):
        c, gi = divmod(G, 4)
        F = WF + (G & 1) * 8
        o = []
        allr = [f"v{F+i}" for i in range(8)]
        if c < 8:
            allr += [f"a{G*8+i}" for i in range(8)] + [f"v{GF+(G&1)*4+i}" for i in range(4)]
        for tile in range(2):
            for rt in range(2):
                if c < 16:
                    xs = G % 32
                    acc = (ACCA if c < 8 else ACCB) + tile * 32 + rt * 16
                    first = xs == 0
                else:
                    xs = (G - 64) * 2 + tile
                    acc = ACCA + rt * 16
                    first = xs == 0
                X = a_((xs * 2 + rt) * 4, 4)
                W = v(F + tile * 4, 4)
                A_, B_ = (X, W) if (typ == "K" and c < 8 and tile == 1) else (W, X)
                C = "0" if first else v(acc, 16)
                o.append(Ins(f"v_mfma_f32_32x32x16_bf16 {v(acc,16)}, {A_}, {B_}, {C}", extra_reads=allr if not o else ()))
        if c < 8:
            C = "0" if G == 0 else v(GA, 4)
            o.append(Ins(f"v_mfma_f32_16x16x32_bf16 {v(GA,4)}, {v(GF+(G&1)*4,4)}, {a_(G*8,4)}, {C}"))
        return o

    def phase1(self, typ, e):
        cfg = self.cfg
        toks = {}
        e.emit(self.setup1(typ))
        for c in range(2):
            p, d = self.dma_x(c); e.emit(p); e.emit(d)
            p2, d2 = self.dma_w(typ, c); e.emit(p2); e.emit(d2)
            toks[c] = d + d2
            if c == 0:
                e.emit(self.setup2(typ))
        e.emit(self.stamp(0))
        e.emit([WaitVM(*toks[0], self.cdma), WaitLDS(self.zw), Ins("s_barrier")])
        e.emit(self.stamp(1))
        e.emit(self.frag_reads(typ, 0) + self.x_reads(0))

        plan = {b: [] for b in range(0, 21)}
        for c in range(2, 8):
            plan[c - 2].append(("x", c))
        for c in range(2, 9):
            plan[c - 2].append(("w", c))
        for c in range(9, 20):
            plan[c - 3].append(("w", c))
        bplan = {"Q": [(0, 4, 8), (1, 2, 10), (2, 3, 12), (3, 0, 18)], "K": [(0, 4, 8), (1, 2, 17), (2, 3, 18), (3, 0, 19)]}[typ]
        self.bquad = {}
        self.btok = {}
        for (b, q, st) in bplan:
            self.bquad[b] = q
            plan[st].append(("b", b, q, 0))
            plan[min(st + (1 if st < 17 else 0), 19)].append(("b", b, q, 1))
        pre_bar = {b: [] for b in range(0, 21)}
        post_bar = {b: [] for b in range(0, 21)}
        fillers = []

        nld = self.nonce_issue()
        f0 = []
        for en in range(2):
            for h in range(2):
                f0.append(Ins(f"ds_read_b64_tr_b16 {v(PHI+en*4+h*2,2)}, {v(T)} offset:{en*512+h*256}"))
        f0.append(Hold("g8"))
        f0 += [Ins(f"v_xor_b32 {v(PHI+i)}, {v(T+1)}, {v(PHI+i)}") for i in range(8)]
        f0 += [Hold("g16"), nld, Hold("g27")] + self.bv_setup() + [Hold("g29")] + self.nonce_check(nld)
        fillers.append(("g4", "g31", f0))
        gx = I(f"""v_lshlrev_b32 {v(T+17)}, 2, {v(LANE)}
v_lshl_add_u32 {v(T+17)}, {s(S_WAVE)}, 8, {v(T+17)}
v_add_u32 {v(T+17)}, {L_GX}, {v(T+17)}""")
        gw = Ins(f"ds_write_b32 {v(T+17)}, {v(GA)}")
        gx += [gw] + I(f"v_xor_b32 {v(T+17)}, 256, {v(T+17)}") + self.gate_consts(GA, 0)
        fillers.append(("g32", "g35", gx))
        pre_bar[9].append(WaitLDS(gw))
        gr = [Ins(f"ds_read_b32 {v(GA+1)}, {v(T+17)}"), Hold("g37")] + self.gate_consts(GA + 1, 1)
        fillers.append(("g35", "g39", gr))

        if typ == "Q":
            o0, s0 = self.gu_full(ACCA, S_H1, rts=(0,))
            o1, s1 = self.gu_full(ACCA, S_H1, rts=(1,))
            fillers.append(("g35", "g55", o0 + [Hold("g39")] + o1))
            pre_bar[16].append(WaitVM(*(s0 + s1)))
            post_bar[16].append(self.flag_store(0))
        else:
            KB = T + 20
            D = T + 36
            AD = T + 44
            fk = []
            for rt in range(2):
                for en in range(2):
                    b0 = ACCA + rt * 16 + en * 8
                    fk += [Ins(f"v_cvt_pk_bf16_f32 {v(KB+(rt*2+en)*4+i)}, {v(b0+2*i)}, {v(b0+2*i+1)}") for i in range(4)]

            def pk(u):
                return Ins(f"v_mfma_f32_32x32x16_bf16 {v(ACCA+(u&1)*16,16)}, {v(PHI+(u&1)*4,4)}, {v(KB+u*4,4)}, 0")
            fk.append(pk(0))
            fk += I(f"""s_lshl_b32 {s(S_T0)}, {s(S_WC)}, 1
s_add_u32 {s(S_T0)}, {s(S_T0)}, {s(S_WR)}
s_mul_i32 {s(S_T0)}, {s(S_T0)}, {4*1040}
s_add_u32 {s(S_T0)}, {s(S_T0)}, {L_PV}
v_add_u32 {v(AD)}, {s(S_T0)}, {v(L16)}
v_and_b32 {v(AD+1)}, 3, {v(LANE)}
v_mul_u32_u24 {v(AD+1)}, 1040, {v(AD+1)}
v_add_u32 {v(AD+1)}, {s(S_T0)}, {v(AD+1)}""")
            wts = []
            for rt in range(2):
                for t in range(2):
                    b0 = ACCA + 32 + rt * 16 + t * 8
                    d0 = T + (t & 1) * 4
                    fk += [Ins(f"v_cvt_pk_bf16_f32 {v(d0+i)}, {v(b0+2*i)}, {v(b0+2*i+1)}") for i in range(4)]
                    w_ = Ins(f"ds_write_b128 {v(AD)}, {v(d0,4)} offset:{(rt*2+t)*1040}")
                    fk.append(w_); wts.append(w_)
            fk += [Ins(f"v_mov_b32 {v(T+8+i)}, 0x3f803f80") for i in range(4)]
            w_ = Ins(f"ds_write_b128 {v(AD+1)}, {v(T+8,4)} offset:1024")
            fk.append(w_); wts.append(w_)
            fk.append(pk(1))
            fk += I(f"""v_lshrrev_b32 {v(AD)}, 5, {v(LANE)}
v_lshlrev_b32 {v(AD)}, 1, {v(AD)}
v_bfe_u32 {v(AD+1)}, {v(LANE)}, 1, 2
v_xor_b32 {v(AD)}, {v(AD)}, {v(AD+1)}
v_lshlrev_b32 {v(AD)}, 4, {v(AD)}
v_and_b32 {v(AD+1)}, 31, {v(LANE)}
v_lshl_add_u32 {v(AD)}, {v(AD+1)}, 6, {v(AD)}
s_lshl_b32 {s(S_T0)}, {s(S_WC)}, 14
s_lshl_b32 {s(S_T1)}, {s(S_WR)}, 12
s_add_u32 {s(S_T0)}, {s(S_T0)}, {s(S_T1)}
s_add_u32 {s(S_T0)}, {s(S_T0)}, {L_PK}
v_add_u32 {v(AD)}, {s(S_T0)}, {v(AD)}
v_xor_b32 {v(AD+1)}, 16, {v(AD)}""")
            for u in range(4):
                rt, en = divmod(u, 2)
                fk += self.softmax(ACCA + (u & 1) * 16, D, T + 12)
                if u + 2 < 4:
                    fk.append(pk(u + 2))
                for q in range(2):
                    w_ = Ins(f"ds_write_b128 {v(AD+q)}, {v(D+q*4,4)} offset:{en*8192+rt*2048}")
                    fk.append(w_); wts.append(w_)
            fk += I(f"""v_bfe_u32 {v(T)}, {v(LANE)}, 4, 1
v_and_b32 {v(T+1)}, 1, {v(LANE)}
v_lshl_add_u32 {v(T)}, {v(T+1)}, 1, {v(T)}
v_lshrrev_b32 {v(T+1)}, 5, {v(LANE)}
v_bfe_u32 {v(T+2)}, {v(LANE)}, 2, 2
v_lshl_add_u32 {v(T+2)}, {v(T+1)}, 2, {v(T+2)}
v_lshrrev_b32 {v(T+3)}, 1, {v(T+2)}
v_xor_b32 {v(T)}, {v(T)}, {v(T+3)}
v_lshlrev_b32 {v(T)}, 4, {v(T)}
v_lshl_add_u32 {v(T)}, {v(T+2)}, 6, {v(T)}
v_bfe_u32 {v(T+3)}, {v(LANE)}, 1, 1
v_lshl_add_u32 {v(T)}, {v(T+3)}, 3, {v(T)}
s_lshl_b32 {s(S_T0)}, {s(S_WC)}, 14
s_lshl_b32 {s(S_T1)}, {s(S_WR)}, 13
s_add_u32 {s(S_T0)}, {s(S_T0)}, {s(S_T1)}
s_add_u32 {s(S_T0)}, {s(S_T0)}, {L_PK}
v_add_u32 {v(AD+2)}, {s(S_T0)}, {v(T)}
v_lshl_add_u32 {v(T)}, {s(S_WR)}, 8, {v(L16)}
v_mov_b32 {v(T+1)}, 1024
v_and_b32 {v(T+2)}, 16, {v(LANE)}
v_cmp_eq_u32 vcc, 0, {v(T+2)}
s_mul_i32 {s(S_T0)}, {s(S_WC)}, {8*1040}
s_add_u32 {s(S_T0)}, {s(S_T0)}, {L_PV}
v_cndmask_b32 {v(T)}, {v(T+1)}, {v(T)}, vcc
v_add_u32 {v(AD+3)}, {s(S_T0)}, {v(T)}""")
            fillers.append(("g35", "g59", fk))
            pre_bar[15].append(WaitLDS(*wts))
            KV = ACCA + 32
            fv = []

            def kvr(u):
                b0 = T + (u & 3) * 8
                return [Ins(f"ds_read_b64_tr_b16 {v(b0,2)}, {v(AD+2)} offset:{u*1024}"),
                        Ins(f"ds_read_b64_tr_b16 {v(b0+2,2)}, {v(AD+2)} offset:{u*1024+512}"),
                        Ins(f"ds_read_b128 {v(b0+4,4)}, {v(AD+3)} offset:{u*1040}")]
            for u in range(3):
                fv += kvr(u)
            kvlast = None
            for u in range(8):
                if u + 3 < 8:
                    kvlast = kvr(u + 3)
                    fv += kvlast
                b0 = T + (u & 3) * 8
                fv.append(Ins(f"v_mfma_f32_32x32x16_bf16 {v(KV,16)}, {v(b0,4)}, {v(b0+4,4)}, {'0' if u == 0 else v(KV,16)}"))
            fv += I(f"""v_lshlrev_b32 {v(AD)}, 4, {v(LANE)}
v_and_b32 {v(AD+1)}, 15, {v(LANE)}
v_mov_b32 {v(AD+2)}, {OOB}
v_cmp_eq_u32 vcc, 0, {v(AD+1)}
s_lshl_b32 {s(S_T0)}, {s(S_KV)}, 4
s_add_u32 {s(S_T0)}, {s(S_T0)}, {s(S_RB)}
s_lshl_b32 {s(S_T0)}, {s(S_T0)}, 10
s_add_u32 {s(S_T0)}, {s(S_T0)}, {WS_KVX}
v_cndmask_b32 {v(AD)}, {v(AD+2)}, {v(AD)}, vcc
s_lshl_b32 {s(S_T1)}, {s(S_KV)}, 6
s_add_u32 {s(S_T1)}, {s(S_T1)}, {s(S_RB)}
s_lshl_b32 {s(S_T1)}, {s(S_T1)}, 4
s_add_u32 {s(S_T1)}, {s(S_T1)}, {WS_KVZ}""")
            fv += [Ins(f"v_cvt_pk_bf16_f32 {v(D+i)}, {v(KV+2*i)}, {v(KV+2*i+1)}") for i in range(8)]
            fv += [Ins(f"v_permlane16_swap_b32 {v(D+i)}, {v(D+4+i)}") for i in range(4)]
            sx = Ins(f"buffer_store_dwordx4 {v(D,4)}, {v(L16)}, {s(R_WS,4)}, {s(S_T0)} offen sc1")
            sz = Ins(f"buffer_store_dwordx4 {v(D+4,4)}, {v(AD)}, {s(R_WS,4)}, {s(S_T1)} offen sc1")
            fv += [sx, sz]
            fillers.append(("g59", "g65", fv))
            pre_bar[17].append(WaitLDS(*kvlast))
            pre_bar[18].append(WaitVM(sx, sz))
            post_bar[18].append(self.flag_store(0))
        o2, s2_ = self.gu_full(ACCB, S_H2)
        fillers.append(("g65", "g80", o2))
        self.st2 = s2_

        main = []
        pend = []

        def add_plan(b):
            for it in plan[b]:
                if it[0] == "x":
                    p, d = self.dma_x(it[1]); toks.setdefault(it[1], []).extend(d)
                elif it[0] == "w":
                    p, d = self.dma_w(typ, it[1]); toks.setdefault(it[1], []).extend(d)
                else:
                    p, d = self.dma_b(it[1], it[2], it[3]); self.btok.setdefault(it[1], []).extend(d)
                pend.append(p + [d[0]])
                pend.extend([[x] for x in d[1:]])
        add_plan(0)
        for G in range(80):
            c, gi = divmod(G, 4)
            mm = self.mfmas(typ, G)
            main.append(Mark(f"g{G}"))
            if G in (32, 64):
                main += self.stamp(2 if G == 32 else 3)
            main.append(mm[0])
            if gi == 3:
                assert not pend, (G, len(pend))
                if c + 1 < 20:
                    main.append(WaitVM(*toks[c + 1]))
                main += pre_bar[c + 1]
                main.append(Ins("s_barrier"))
                main += post_bar[c + 1]
                add_plan(c + 1)
            if G + 1 < 80:
                main += self.frag_reads(typ, G + 1)
            for k in range(1, len(mm)):
                main.append(mm[k])
                if k == 1 and G + 1 < 32:
                    main += self.x_reads(G + 1)
                    continue
                if k <= 3 and pend:
                    main += pend.pop(0)
                    if G < 4 and pend and k == 3:
                        main += pend.pop(0)
        assert not pend
        main.append(Mark("g80"))
        e.emit(interleave(main, fillers, cfg.budget, self.log))

    def tail_k(self, e):
        sts = []
        for rt in range(2):
            x, st = self.gu_frag(ACCA + rt * 16, ACCA + rt * 16 + 8, rt, S_H3, 0, d0=T + 8 + 4 * rt)
            e.emit(x); sts.append(st)
            if rt == 0:
                e.emit([WaitVM(*self.st2), Ins("s_barrier"), self.flag_store(1)])
        self.b_more(e, [(4, 1)])
        e.emit([WaitVM(*sts), Ins("s_barrier"), self.flag_store(2)])

    def b_more(self, e, lst):
        for (b, q) in lst:
            self.bquad[b] = q
            for h in range(2):
                p, d = self.dma_b(b, q, h)
                self.btok.setdefault(b, []).extend(d)
                e.emit(p + d)

    def tail_q(self, e):
        QB = T + 20
        PQ = WF
        e.emit(f"""v_and_b32 {v(T+16)}, 15, {v(LANE)}
v_lshlrev_b32 {v(T+16)}, 11, {v(T+16)}
s_lshl_b32 {s(S_T2)}, {s(S_M)}, 7
s_add_u32 {s(S_T2)}, {s(S_T2)}, {WS_FL}""")
        for rt in range(2):
            for en in range(2):
                b0 = ACCA + rt * 16 + en * 8
                e.emit([Ins(f"v_cvt_pk_bf16_f32 {v(QB+(rt*2+en)*4+i)}, {v(b0+2*i)}, {v(b0+2*i+1)}") for i in range(4)])
        for u in range(4):
            e.emit(f"v_mfma_f32_32x32x16_bf16 {v(ACCA+u*16,16)}, {v(PHI+(u&1)*4,4)}, {v(QB+u*4,4)}, 0")
        e.emit(self.softmax(ACCA, PQ, T + 12))
        e.emit([WaitVM(*self.st2), Ins("s_barrier"), self.flag_store(1)])
        pl = self.poll_issue(T + 16, R_WS, s(S_T2), 0)
        e.emit(pl)
        e.emit(self.softmax(ACCA + 16, PQ + 8, T + 12))
        e.emit(self.poll_check(pl))
        e.emit(f"""s_lshl_b32 {s(S_T0)}, {s(S_KV)}, 14
s_add_u32 {s(S_T0)}, {s(S_T0)}, {WS_KVX}
s_lshl_b32 {s(S_T1)}, {s(S_KV)}, 10
s_add_u32 {s(S_T1)}, {s(S_T1)}, {WS_KVZ}
buffer_load_dwordx4 {v(T,4)}, {v(L16)}, {s(R_WS,4)}, {s(S_T1)} offen sc1""")
        for p in range(16):
            if p and p % 4 == 0:
                e.emit(f"s_add_u32 {s(S_T0)}, {s(S_T0)}, 4096")
            e.emit(f"buffer_load_dwordx4 {v(ACCB+4*p,4)}, {v(L16)}, {s(R_WS,4)}, {s(S_T0)} offen offset:{(p&3)*1024} sc1")
        e.emit(self.softmax(ACCA + 32, PQ + 16, T + 12))
        e.emit(self.softmax(ACCA + 48, PQ + 24, T + 12))
        SEL = QB
        e.emit(f"""v_lshrrev_b32 {v(T+12)}, 5, {v(LANE)}
v_lshlrev_b32 {v(T+12)}, 2, {v(T+12)}
v_and_b32 {v(T+13)}, 31, {v(LANE)}
v_sub_u32 {v(T+12)}, {v(T+13)}, {v(T+12)}
v_and_b32 {v(T+13)}, 1, {v(T+12)}
v_lshlrev_b32 {v(T+13)}, 4, {v(T+13)}
v_mov_b32 {v(T+14)}, 0x3f80
v_lshlrev_b32 {v(T+13)}, {v(T+13)}, {v(T+14)}
v_and_b32 {v(T+12)}, -2, {v(T+12)}""")
        for jj in range(4):
            e.emit(f"v_cmp_eq_u32 vcc, {(2*jj & 3) + 8*(jj >> 1)}, {v(T+12)}\nv_cndmask_b32 {v(SEL+jj)}, 0, {v(T+13)}, vcc")
        XS = ACCA
        for p in range(16):
            e.emit(f"v_mfma_f32_32x32x16_bf16 {v(XS,16)}, {v(SEL,4)}, {v(ACCB+4*p,4)}, {'0' if p == 0 else v(XS,16)}")
            if p == 0:
                Z = T + 4
                for i in range(4):
                    e.emit(f"v_lshlrev_b32 {v(Z+2*i)}, 16, {v(T+i)}\nv_and_b32 {v(Z+2*i+1)}, 0xffff0000, {v(T+i)}")
            if 1 <= p <= 8:
                sh = (8, 4, 2, 1)[(p - 1) // 2]
                for i in range(4):
                    r = Z + ((p - 1) & 1) * 4 + i
                    e.emit(f"v_add_f32 {v(r)}, {v(r)}, {v(r)} row_ror:{sh} row_mask:0xf bank_mask:0xf")
        F = QB + 4
        e.emit([Ins(f"v_cvt_pk_bf16_f32 {v(F+4+i)}, {v(Z+2*i)}, {v(Z+2*i+1)}") for i in range(4)])
        e.emit(f"""s_lshl_b32 {s(S_T0)}, {s(S_WC)}, 12
s_add_u32 {s(S_T0)}, {s(S_T0)}, {L_FX}
v_add_u32 {v(T+12)}, {s(S_T0)}, {v(L16)}
v_lshl_add_u32 {v(T+13)}, {s(S_WR)}, 11, {v(T+12)}""")
        e.emit([Ins(f"v_cvt_pk_bf16_f32 {v(F+i)}, {v(XS+2*i)}, {v(XS+2*i+1)}") for i in range(4)])
        e.emit([Ins(f"v_permlane16_swap_b32 {v(F+i)}, {v(F+4+i)}") for i in range(4)])
        w0 = Ins(f"ds_write_b128 {v(T+13)}, {v(F,4)}")
        w1 = Ins(f"ds_write_b128 {v(T+13)}, {v(F+4,4)} offset:1024")
        e.emit([w0, w1, WaitLDS(w0, w1), Ins("s_barrier")])
        FF = T + 32
        rd = [Ins(f"ds_read_b128 {v(FF+4*i,4)}, {v(T+12)} offset:{i*1024}") for i in range(4)]
        e.emit(rd)
        for u in range(4):
            en = u & 1
            for t in range(2):
                e.emit(f"v_mfma_f32_32x32x16_bf16 {v(ACCA+u*16,16)}, {v(FF+(en*2+t)*4,4)}, {v(PQ+u*8+t*4,4)}, {'0' if t == 0 else v(ACCA+u*16,16)}")
        sts = []
        for u in range(4):
            rt, en = divmod(u, 2)
            O = ACCA + u * 16
            d0 = T + 4 * u
            e.emit(f"""v_add_f32 {v(O+8)}, {hex(f2u(1e-6))}, {v(O+8)}
v_rcp_f32 {v(O+8)}, {v(O+8)}
v_mul_f32 {v(O+8)}, {v(O+8)}, {v(GG+rt)}""")
            e.emit([Ins(f"v_mul_f32 {v(O+i)}, {v(O+i)}, {v(O+8)}") for i in range(8)])
            e.emit([Ins(f"v_cvt_pk_bf16_f32 {v(d0+i)}, {v(O+2*i)}, {v(O+2*i+1)}") for i in range(4)])
            st = Ins(f"buffer_store_dwordx4 {v(d0,4)}, {v(HV+rt)}, {s(R_WS,4)}, {s(S_H3)} offen offset:{en*2048} sc1")
            e.emit(st); sts.append(st)
        e.emit([WaitVM(*sts), Ins("s_barrier"), self.flag_store(2)])
        self.b_more(e, [(4, 1)])

    def phase2(self, typ, e):
        ACC = ACCB
        AB = [0, 32, WF]
        polls = {0: (POLL8, 1024, 0), 2: (POLL8, 0, 8), 4: (POLL8, 1024, 8), 6: (POLL4, 0, 16), 7: (POLL8, 1024, 16)}
        nxt = 5
        for b in range(0, 4):
            e.emit(WaitVM(*self.btok[b]))
            x = self.xfer_b(b, self.bquad[b])
            e.emit(x)
            e.emit(WaitLDS(*x))
            self.b_more(e, [(nxt, self.bquad[b])]); nxt += 1

        def issue_a(b):
            if b in polls:
                vo, so, im = polls[b]
                pl = self.poll_issue(vo, R_WS, s(S_PB), so + im)
                e.emit(pl)
                e.emit(self.poll_check(pl))
            p, d = self.load_a(b, AB[b % 3])
            e.emit(p + d)
        e.emit(self.stamp(5))
        issue_a(0); issue_a(1)
        for b in range(9):
            if b + 2 < 9:
                issue_a(b + 2)
            xb = b + 4
            fill = []
            if 4 <= xb < 9:
                fill = [WaitVM(*self.btok[xb])] + self.xfer_b(xb, self.bquad[xb])
            main = [Mark("s")]
            for ks in range(4):
                for cc in range(2):
                    for rt in range(2):
                        acc = ACC + (cc + 2 * rt) * 16
                        C = "0" if (b == 0 and ks == 0) else v(acc, 16)
                        main.append(Ins(f"v_mfma_f32_32x32x16_bf16 {v(acc,16)}, {a_((b%8)*32+(ks*2+cc)*4,4)}, {v(AB[b%3]+(ks*2+rt)*4,4)}, {C}"))
            main.append(Mark("e"))
            e.emit(interleave(main, [("s", "e", fill)] if fill else [], 8))
            if b == 1:
                e.emit(self.stamp(6))
            if b == 6:
                e.emit(self.stamp(7))
        e.emit(self.stamp(8))
        e.emit(f"v_add_u32 {v(T)}, {s(S_W8K)}, {v(L16)}")
        for q in range(1, 4):
            e.emit(f"v_xor_b32 {v(T+q)}, {q*8192}, {v(T)}")
        offs = {1: 0, 2: 4096, 3: 32768}
        e.emit(f"""v_and_b32 {v(T+4)}, 31, {v(LANE)}
v_lshl_add_u32 {v(T+4)}, {s(S_WR)}, 5, {v(T+4)}
v_lshlrev_b32 {v(T+4)}, 10, {v(T+4)}
v_lshrrev_b32 {v(T+5)}, 5, {v(LANE)}
v_lshl_add_u32 {v(T+4)}, {v(T+5)}, 4, {v(T+4)}
v_lshl_add_u32 {v(T+4)}, {s(S_WC)}, 6, {v(T+4)}""")
        ws_ = []
        for q in (2, 1, 3):
            for i in range(4):
                w_ = Ins(f"ds_write_b128 {v(T)}, {v(ACC+q*16+4*i,4)} offset:{offs[q]+i*1024}")
                e.emit(w_); ws_.append(w_)
        e.emit([WaitLDS(*ws_), Ins("s_barrier")])
        for i in range(4):
            for q in range(1, 4):
                e.emit(f"ds_read_b128 {v((q-1)*16+4*i,4)}, {v(T+q)} offset:{offs[q]+i*1024}")
        D = T + 8
        for i in range(4):
            for j in range(4):
                r = 4 * i + j
                e.emit(f"v_add_f32 {v(ACC+r)}, {v(ACC+r)}, {v(r)}")
            for j in range(4):
                r = 4 * i + j
                e.emit(f"v_add_f32 {v(16+r)}, {v(16+r)}, {v(32+r)}")
            for j in range(4):
                r = 4 * i + j
                e.emit(f"v_add_f32 {v(ACC+r)}, {v(ACC+r)}, {v(16+r)}")
            e.emit(f"v_cvt_pk_bf16_f32 {v(D+2*i)}, {v(ACC+4*i)}, {v(ACC+4*i+1)}\nv_cvt_pk_bf16_f32 {v(D+2*i+1)}, {v(ACC+4*i+2)}, {v(ACC+4*i+3)}")
            if i & 1:
                b0 = D + 2 * (i - 1)
                e.emit(f"v_permlane32_swap_b32 {v(b0)}, {v(b0+2)}\nv_permlane32_swap_b32 {v(b0+1)}, {v(b0+3)}")
                e.emit(f"buffer_store_dwordx4 {v(b0,4)}, {v(T+4)}, {s(R_OUT,4)}, 0 offen offset:{(i>>1)*32}")
        if self.cfg.prof:
            e.emit(self.stamp(9))
            e.emit("s_waitcnt vmcnt(0)")
            e.emit(self.stamp(10))
            e.emit(f"s_memrealtime {s(4+2*11,2)}\ns_waitcnt lgkmcnt(0)")
            for i in range(11):
                e.emit(f"s_sub_u32 {s(S_T0)}, {s(4+2*i)}, {s(S_ST0)}\nv_mov_b32 {v(i)}, {s(S_T0)}")
            e.emit(f"v_mov_b32 v11, {s(S_RT)}\nv_mov_b32 v12, {s(4+22)}\nv_mov_b32 v13, {s(S_TYPE)}\nv_mov_b32 v14, 0\nv_mov_b32 v15, 0")
            e.emit(f"""s_lshl_b32 {s(S_T0)}, s2, 2
s_add_u32 {s(S_T0)}, {s(S_T0)}, {s(S_WAVE)}
s_lshl_b32 {s(S_T0)}, {s(S_T0)}, 6
s_add_u32 {s(S_T0)}, {s(S_T0)}, {WS_PROF}
v_lshlrev_b32 v16, 24, {v(LANE)}""")
            for i in range(4):
                e.emit(f"buffer_store_dwordx4 {v(4*i,4)}, v16, {s(R_WS,4)}, {s(S_T0)} offen offset:{16*i}")
        if self.cfg.padto:
            e.emit(f"""v_readfirstlane_b32 {s(S_T0)}, {v(NONCE)}
L_pad{typ}:
s_memrealtime s[4:5]
s_waitcnt lgkmcnt(0)
s_sub_u32 {s(S_T1)}, s4, {s(S_T0)}
s_cmp_lt_u32 {s(S_T1)}, {self.cfg.padto}
s_cbranch_scc1 L_pad{typ}""")
        if self.cfg.padcyc:
            e.emit(f"""L_pad{typ}:
s_memtime s[4:5]
s_waitcnt lgkmcnt(0)
s_sub_u32 {s(S_T1)}, s4, {s(S_ST0)}
s_cmp_lt_u32 {s(S_T1)}, {self.cfg.padcyc}
s_cbranch_scc1 L_pad{typ}""")
        e.emit("s_endpgm")

    def build(self):
        e0 = Emitter()
        self.prologue(e0)
        txt = e0.text()
        for typ in ("K", "Q"):
            e = e0.fork()
            if typ == "Q":
                e.emit("L_typeQ:")
            self.phase1(typ, e)
            e.emit(self.stamp(4))
            (self.tail_k if typ == "K" else self.tail_q)(e)
            self.phase2(typ, e)
            self.log.append(f"type {typ}: {e.stats}")
            txt += e.text()
        txt += "\n".join(self.slow) + "\nL_end:\n"
        kn = NAME + "_kernel"
        head = open("cdna_kernels/" + NAME + ".s.ref").read().split("; Override launch")[0] if False else ""
        return f"""; fused hedgehog linear attention + GEGLU gated mix (generated by work/gen.py)
; @launch grid=(256,1,1) block=(256,1,1) lds={LDS_BYTES}
.amdgcn_target "amdgcn-amd-amdhsa--gfx950"
.text
.globl {kn}
.p2align 8
.type {kn},@function
{kn}:
{txt}  s_endpgm
.section .rodata,"a"
.p2align 6
.amdhsa_kernel {kn}
  .amdhsa_next_free_vgpr 512
  .amdhsa_next_free_sgpr 102
  .amdhsa_accum_offset 256
  .amdhsa_group_segment_fixed_size 0
  .amdhsa_kernarg_size 96
  .amdhsa_user_sgpr_count 2
  .amdhsa_user_sgpr_kernarg_segment_ptr 1
  .amdhsa_system_sgpr_workgroup_id_x 1
.end_amdhsa_kernel
"""


if __name__ == "__main__":
    cfg = Cfg()
    out = sys.argv[1]
    for kv in sys.argv[2:]:
        k, val = kv.split("=")
        cur = getattr(cfg, k)
        setattr(cfg, k, val if isinstance(cur, str) else type(cur)(int(val)))
    g = Gen(cfg)
    open(out, "w").write(g.build())
    print("\n".join(g.log))
```

```python
import sys, struct, math
from fw import *

NAME = "gated_mix__linear_kernel_hedgehog__glu_gated_geglu__prompt"


def f2u(x):
    return struct.unpack("<I", struct.pack("<f", x))[0]


LOG2E = 1.4426950408889634
K1 = -2.0 * math.sqrt(2.0 / math.pi) * LOG2E
K2 = K1 * 0.044715

WS_H = 0
WS_KVX = 0xA00000
WS_KVZ = 0xA80000
WS_FL = 0xA90000
WS_PROF = 0xB00000
WS_SIZE = 0xC00000
OOB = 0x7FFFFF00

L_W = 0
L_X = 65536
L_PK = 65536
L_PV = 98304
L_CG = 115712
L_CZ = L_CG + 1024
L_CP = L_CG + 2048
L_GX = L_CG + 4096
L_FX = 32768
LDS_BYTES = 163840

P_X, P_WQKV, P_WPHI, P_WO, P_BX, P_WG, P_WU, P_WD, P_GW, P_OUT, P_DBG, P_WS = range(4, 28, 2)
R_X, R_W, R_WS, R_WD, R_WO, R_OUT, R_DBG = 28, 32, 36, 40, 44, 48, 52
S_RT = 56
S_WAVE, S_WR, S_WC, S_M, S_RB, S_ROT = 58, 59, 60, 61, 62, 63
S_CH = 64
S_CH3 = 72
S_W4K, S_W8K, S_TX, S_TW = 76, 77, 78, 79
S_W2B, S_W2N, S_W3B, S_W3N = 80, 82, 84, 86
S_TYPE = 83
S_H1, S_H2, S_H3 = 87, 88, 89
S_L0, S_L1, S_L4 = 90, 91, 92
S_AB, S_PB = 93, 94
S_T0, S_T1, S_T2 = 95, 96, 97
S_SPIN = 98
S_KV = 99
S_ST0 = 100

ACCA, ACCB = 0, 64
WF = 128
GF = 144
GA = 152
XA = 156
XV = 164
WV = 168
WA, WA3, GAD = 172, 173, 174
LANE = 175
NONCE = 176
PF = 178
POLL8, POLL4, FLOFF = 180, 181, 182
L16 = 183
C1 = 184
GG = 186
HV = 188
AV = 190
PHI = 192
BA = 200
VK1 = 206
VL2E = 207
T = 208


def v(a, n=1):
    return f"v{a}" if n == 1 else f"v[{a}:{a+n-1}]"


def a_(a, n=1):
    return f"a{a}" if n == 1 else f"a[{a}:{a+n-1}]"


def s(a, n=1):
    return f"s{a}" if n == 1 else f"s[{a}:{a+n-1}]"


class Cfg:
    prof = False
    rotmode = 2
    budget = 24
    dma_flags = ""
    spin_limit = 1 << 14
    padto = 0
    padcyc = 0
    chan = -1
    changlob = 0


class Gen:
    def __init__(self, cfg):
        self.cfg = cfg
        self.slow = []
        self.nlab = 0
        self.log = []

    def stamp(self, i):
        if self.cfg.chan == i:
            return [Ins(f"s_memrealtime {s(S_ST0,2)}", cost=4)]
        if not self.cfg.prof:
            return []
        return [Ins(f"s_memtime {s(4+2*i,2)}", cost=4)]

    def poll_issue(self, voff, srd, soff, imm):
        txt = f"buffer_load_dwordx2 {v(PF,2)}, {v(voff)}, {s(srd,4)}, {soff} offen offset:{imm} sc1"
        return Ins(txt)

    def poll_check(self, ld):
        n = self.nlab; self.nlab += 1
        self.slow.append(f"""L_slow{n}:
  s_mov_b32 {s(S_SPIN)}, 0
L_slow{n}_l:
  s_add_u32 {s(S_SPIN)}, {s(S_SPIN)}, 1
  s_cmp_gt_u32 {s(S_SPIN)}, {self.cfg.spin_limit}
  s_cbranch_scc1 L_ret{n}
  {ld.text}
  s_waitcnt vmcnt(0)
  v_cmp_ne_u64 vcc, {v(PF,2)}, {v(NONCE,2)}
  s_cbranch_vccnz L_slow{n}_l
  s_branch L_ret{n}""")
        return [Ins(f"v_cmp_ne_u64 vcc, {v(PF,2)}, {v(NONCE,2)}"),
                Ins(f"s_cbranch_vccnz L_slow{n}", glue=True), Raw(f"L_ret{n}:", glue=True)]

    def nonce_issue(self):
        return Ins(f"buffer_load_dwordx2 {v(NONCE,2)}, off, {s(R_DBG,4)}, 0 sc1")

    def nonce_check(self, ld):
        n = self.nlab; self.nlab += 1
        self.slow.append(f"""L_slow{n}:
  s_mov_b32 {s(S_SPIN)}, 0
L_slow{n}_l:
  s_add_u32 {s(S_SPIN)}, {s(S_SPIN)}, 1
  s_cmp_gt_u32 {s(S_SPIN)}, {self.cfg.spin_limit}
  s_cbranch_scc1 L_ret{n}
  {ld.text}
  s_waitcnt vmcnt(0)
  v_min_u32 {v(PF)}, {v(NONCE)}, {v(NONCE+1)}
  v_cmp_eq_u32 vcc, 0, {v(PF)}
  s_cbranch_vccnz L_slow{n}_l
  s_branch L_ret{n}""")
        return [Ins(f"v_min_u32 {v(PF)}, {v(NONCE)}, {v(NONCE+1)}"), Ins(f"v_cmp_eq_u32 vcc, 0, {v(PF)}", glue=True),
                Ins(f"s_cbranch_vccnz L_slow{n}", glue=True), Raw(f"L_ret{n}:", glue=True)]

    def flag_store(self, idx):
        return Ins(f"buffer_store_dwordx2 {v(NONCE,2)}, {v(FLOFF)}, {s(R_WS,4)}, 0 offen offset:{idx*8} sc1")

    def dma_x(self, c):
        out = I(f"s_add_u32 m0, {s(S_W4K)}, {L_X + (c % 3) * 16384}\ns_lshl_b32 {s(S_TX)}, {s(S_CH + c)}, 7")
        d = [Ins(f"buffer_load_dwordx4 {v(XV+j)}, {s(R_X,4)}, {s(S_TX)} offen offset:{j*1024} {self.cfg.dma_flags} lds") for j in range(4)]
        return out, d

    def dma_w(self, typ, c):
        if c < 16:
            rs = 3072 if (typ == "K" and c < 8) else 3584
            ch = S_CH + (c % 8)
        else:
            rs = 3584 if typ == "K" else 3072
            ch = S_CH3 + (c - 16)
        pre = []
        if c == 8:
            pre += I(f"s_mov_b32 {s(R_W)}, {s(S_W2B)}\ns_mov_b32 {s(R_W+1)}, {s(S_W2B+1)}\ns_mov_b32 {s(R_W+2)}, {s(S_W2N)}")
            if typ == "K":
                pre += self.wv_full(3584)
        if c == 16:
            pre += I(f"s_mov_b32 {s(R_W)}, {s(S_W3B)}\ns_mov_b32 {s(R_W+1)}, {s(S_W3B+1)}\ns_mov_b32 {s(R_W+2)}, {s(S_W3N)}")
            pre += self.wv_half() if typ == "K" else self.wv_full(3072)
        pre += I(f"s_add_u32 m0, {s(S_W4K)}, {L_W + (c % 4) * 16384}\ns_mul_i32 {s(S_TW)}, {s(ch)}, {64*rs}")
        d = [Ins(f"buffer_load_dwordx4 {v(WV+j)}, {s(R_W,4)}, {s(S_TW)} offen offset:{j*1024} {self.cfg.dma_flags} lds") for j in range(4)]
        return pre, d

    def wv_full(self, rs):
        o = I(f"""v_lshrrev_b32 {v(WV+1)}, 3, {v(LANE)}
v_lshl_add_u32 {v(WV+1)}, {s(S_WC)}, 5, {v(WV+1)}
v_mul_u32_u24 {v(WV+1)}, {rs}, {v(WV+1)}
v_lshrrev_b32 {v(WV+2)}, 2, {v(LANE)}
v_and_b32 {v(WV+2)}, 4, {v(WV+2)}
v_and_b32 {v(WV+3)}, 7, {v(LANE)}
v_xor_b32 {v(WV+2)}, {v(WV+2)}, {v(WV+3)}
v_lshl_add_u32 {v(WV)}, {v(WV+2)}, 4, {v(WV+1)}""")
        for j in range(1, 4):
            o += I(f"v_add_u32 {v(WV+j)}, {j*(8*rs-1024)}, {v(WV)}")
        return o

    def wv_half(self):
        o = I(f"""v_lshrrev_b32 {v(WV+1)}, 2, {v(LANE)}
v_mul_u32_u24 {v(WV+1)}, 3584, {v(WV+1)}
v_and_b32 {v(WV+2)}, 3, {v(LANE)}
v_lshlrev_b32 {v(WV+3)}, 1, {s(S_WR)}
v_xor_b32 {v(WV+2)}, {v(WV+2)}, {v(WV+3)}
v_lshl_add_u32 {v(WV)}, {v(WV+2)}, 4, {v(WV+1)}""")
        for j in range(1, 4):
            o += I(f"v_add_u32 {v(WV+j)}, {j*(16*3584-1024)}, {v(WV)}")
        return o

    def bv_setup(self):
        o = I(f"""v_lshrrev_b32 {v(XV+1)}, 3, {v(LANE)}
v_lshlrev_b32 {v(XV+1)}, 10, {v(XV+1)}
v_lshrrev_b32 {v(XV+2)}, 2, {v(LANE)}
v_and_b32 {v(XV+2)}, 4, {v(XV+2)}
v_and_b32 {v(XV+3)}, 7, {v(LANE)}
v_xor_b32 {v(XV+2)}, {v(XV+2)}, {v(XV+3)}
v_lshl_add_u32 {v(XV)}, {v(XV+2)}, 4, {v(XV+1)}""")
        for j in range(1, 4):
            o += I(f"v_add_u32 {v(XV+j)}, {j*(8*1024-1024)}, {v(XV)}")
        return o

    BLK = [(12, S_L0), (12, S_L1), (0, S_L0), (0, S_L1), (20, S_L0), (20, S_L1), (8, S_L4), (28, S_L0), (28, S_L1)]

    def dma_b(self, b, quad, half):
        base, sl = self.BLK[b]
        srd = R_WD
        if base == 28:
            srd, base = R_WO, 0
        pre = I(f"""s_add_u32 m0, {s(S_W8K)}, {quad*32768 + half*4096}
s_lshl_b32 {s(S_TX)}, {s(sl)}, 16
s_add_u32 {s(S_TX)}, {s(S_TX)}, {base*65536 + half*32768}""")
        d = [Ins(f"buffer_load_dwordx4 {v(XV+j)}, {s(srd,4)}, {s(S_TX)} offen offset:{j*1024} {self.cfg.dma_flags} lds") for j in range(4)]
        return pre, d

    def xfer_b(self, b, quad):
        o = []
        areg = (b % 8) * 32
        for ks in range(4):
            for cc in range(2):
                for h in range(2):
                    ad = BA + 2 * (quad // 2) + cc
                    off = (quad % 2) * 32768 + ks * 2048 + h * 1024
                    r = areg + (ks * 2 + cc) * 4 + h * 2
                    o.append(Ins(f"ds_read_b64_tr_b16 {a_(r,2)}, {v(ad)} offset:{off}"))
        return o

    def load_a(self, b, dst):
        base, sl = self.BLK[b]
        pre = I(f"""s_lshl_b32 {s(S_T0)}, {s(sl)}, 13
s_add_u32 {s(S_T0)}, {s(S_T0)}, {s(S_AB)}
s_add_u32 {s(S_T0)}, {s(S_T0)}, {base*8192}
s_add_u32 {s(S_T1)}, {s(S_T0)}, 4096""")
        d = []
        for ks in range(4):
            for rt in range(2):
                r = dst + (ks * 2 + rt) * 4
                d.append(Ins(f"buffer_load_dwordx4 {v(r,4)}, {v(AV+rt)}, {s(R_WS,4)}, {s(S_T0 + ks//2)} offen offset:{(ks&1)*2048} sc1"))
        return pre, d

    def gu_frag(self, g, u, rt, soff, imm, t0=T, d0=T + 8):
        o = []
        c = v(C1 + rt)
        R = range(8)
        o += [Ins(f"v_mul_f32 {v(t0+i)}, {v(g+i)}, {v(g+i)}") for i in R]
        o += [Ins(f"v_fmamk_f32 {v(t0+i)}, {v(t0+i)}, {hex(f2u(K2))}, {v(VK1)}") for i in R]
        o += [Ins(f"v_mul_f32 {v(t0+i)}, {v(t0+i)}, {v(g+i)}") for i in R]
        for i in R:
            o.append(Ins(f"v_exp_f32 {v(t0+i)}, {v(t0+i)}"))
            o.append(Ins(f"v_mul_f32 {v(u+i)}, {v(g+i)}, {v(u+i)}"))
        for i in range(9):
            if i < 8:
                o.append(Ins(f"v_fma_f32 {v(t0+i)}, {v(t0+i)}, {c}, {c}"))
            if i > 0:
                o.append(Ins(f"v_rcp_f32 {v(t0+i-1)}, {v(t0+i-1)}"))
        o += [Ins(f"v_mul_f32 {v(u+i)}, {v(u+i)}, {v(t0+i)}") for i in R]
        o += [Ins(f"v_cvt_pk_bf16_f32 {v(d0+i)}, {v(u+2*i)}, {v(u+2*i+1)}") for i in range(4)]
        st = Ins(f"buffer_store_dwordx4 {v(d0,4)}, {v(HV+rt)}, {s(R_WS,4)}, {s(soff)} offen offset:{imm} sc1")
        o.append(st)
        return o, st

    def gu_full(self, acc, soff, rts=(0, 1)):
        o, sts = [], []
        k = 0
        for rt in rts:
            for t in range(2):
                x, st = self.gu_frag(acc + rt * 16 + t * 8, acc + 32 + rt * 16 + t * 8, rt, soff, t * 2048, d0=T + 8 + 4 * (k & 1))
                o += x; sts.append(st); k += 1
        return o, sts

    def softmax(self, P, D, t0):
        o = []
        a, b = t0, t0 + 1
        o.append(Ins(f"v_max3_f32 {v(a)}, {v(P)}, {v(P+1)}, {v(P+2)}"))
        o.append(Ins(f"v_max3_f32 {v(b)}, {v(P+8)}, {v(P+9)}, {v(P+10)}"))
        o.append(Ins(f"v_max3_f32 {v(a)}, {v(a)}, {v(P+3)}, {v(P+4)}"))
        o.append(Ins(f"v_max3_f32 {v(b)}, {v(b)}, {v(P+11)}, {v(P+12)}"))
        o.append(Ins(f"v_max3_f32 {v(a)}, {v(a)}, {v(P+5)}, {v(P+6)}"))
        o.append(Ins(f"v_max3_f32 {v(b)}, {v(b)}, {v(P+13)}, {v(P+14)}"))
        o.append(Ins(f"v_max3_f32 {v(a)}, {v(a)}, {v(P+7)}, {v(P+15)}"))
        o.append(Ins(f"v_max_f32 {v(a)}, {v(a)}, {v(b)}"))
        o.append(Ins(f"v_mul_f32 {v(a)}, {hex(f2u(-LOG2E))}, {v(a)}"))
        for i in range(19):
            if i < 16:
                o.append(Ins(f"v_fma_f32 {v(P+i)}, {v(P+i)}, {v(VL2E)}, {v(a)}"))
            if 1 <= i < 17:
                o.append(Ins(f"v_exp_f32 {v(P+i-1)}, {v(P+i-1)}"))
            j = i - 3
            if j == 1:
                o.append(Ins(f"v_add_f32 {v(b)}, {v(P)}, {v(P+1)}"))
            elif j > 1:
                o.append(Ins(f"v_add_f32 {v(b)}, {v(b)}, {v(P+j)}"))
        o.append(Ins(f"v_rcp_f32 {v(b)}, {v(b)}"))
        for i in range(16):
            o.append(Ins(f"v_mul_f32 {v(P+i)}, {v(P+i)}, {v(b)}"))
        for i in range(8):
            o.append(Ins(f"v_cvt_pk_bf16_f32 {v(D+i)}, {v(P+2*i)}, {v(P+2*i+1)}"))
        return o

    def gate_consts(self, src, rt):
        t = T + 16
        return I(f"""v_mul_f32 {v(t)}, {v(VL2E)}, {v(src)}
v_exp_f32 {v(C1+rt)}, {v(t)}
v_exp_f32 {v(GG+rt)}, -{v(t)}
v_add_f32 {v(C1+rt)}, 1.0, {v(C1+rt)}
v_add_f32 {v(GG+rt)}, 1.0, {v(GG+rt)}
v_min_f32 {v(C1+rt)}, {hex(f2u(2.0**100))}, {v(C1+rt)}
v_rcp_f32 {v(GG+rt)}, {v(GG+rt)}""")

    def prologue(self, e):
        cfg = self.cfg
        e.emit(f"""s_cmp_ge_u32 s2, 256
s_cbranch_scc1 L_end
s_load_dwordx16 s[4:19], s[0:1], 0
s_load_dwordx8 s[20:27], s[0:1], 64
s_memrealtime {s(S_RT,2)}""")
        if cfg.prof or cfg.padcyc:
            e.emit(f"s_memtime {s(S_ST0,2)}")
        if cfg.chan == 99:
            e.emit(f"s_memrealtime {s(S_ST0,2)}")
        e.emit(f"""v_lshrrev_b32 v1, 6, v0
v_and_b32 {v(LANE)}, 63, v0
v_readfirstlane_b32 {s(S_WAVE)}, v1
s_and_b32 {s(S_T0)}, s2, 7
s_lshr_b32 {s(S_T1)}, s2, 3
s_lshr_b32 {s(S_RB)}, {s(S_T0)}, 2
s_lshl_b32 {s(S_RB)}, {s(S_RB)}, 3
s_and_b32 {s(S_T2)}, {s(S_T1)}, 7
s_add_u32 {s(S_RB)}, {s(S_RB)}, {s(S_T2)}
s_lshr_b32 {s(S_T1)}, {s(S_T1)}, 3
s_lshr_b32 {s(S_TYPE)}, {s(S_T1)}, 1
s_and_b32 {s(S_M)}, {s(S_T0)}, 3
s_lshl_b32 {s(S_M)}, {s(S_M)}, 1
s_and_b32 {s(S_TX)}, {s(S_T1)}, 1
s_add_u32 {s(S_M)}, {s(S_M)}, {s(S_TX)}""")
        if cfg.rotmode == 0:
            e.emit(f"s_mov_b32 {s(S_ROT)}, 0")
        elif cfg.rotmode == 1:
            e.emit(f"s_add_u32 {s(S_ROT)}, {s(S_T1)}, {s(S_T2)}\ns_and_b32 {s(S_ROT)}, {s(S_ROT)}, 1\ns_lshl_b32 {s(S_ROT)}, {s(S_ROT)}, 2")
        elif cfg.rotmode == 3:
            e.emit(f"s_add_u32 {s(S_ROT)}, {s(S_T1)}, {s(S_T2)}\ns_and_b32 {s(S_ROT)}, {s(S_ROT)}, 3\ns_lshl_b32 {s(S_ROT)}, {s(S_ROT)}, 1")
        else:
            e.emit(f"s_lshl_b32 {s(S_ROT)}, {s(S_T1)}, 1\ns_add_u32 {s(S_ROT)}, {s(S_ROT)}, {s(S_T2)}\ns_and_b32 {s(S_ROT)}, {s(S_ROT)}, 7")
        e.emit(f"""s_lshr_b32 {s(S_WR)}, {s(S_WAVE)}, 1
s_and_b32 {s(S_WC)}, {s(S_WAVE)}, 1
s_lshl_b32 {s(S_W4K)}, {s(S_WAVE)}, 12
s_lshl_b32 {s(S_W8K)}, {s(S_WAVE)}, 13
s_mov_b32 {s(S_CH)}, {s(S_ROT)}
s_add_u32 {s(S_CH+1)}, {s(S_ROT)}, 1
s_and_b32 {s(S_CH+1)}, {s(S_CH+1)}, 7""")
        e.emit(f"""v_lshrrev_b32 v2, 3, {v(LANE)}
v_lshl_add_u32 v2, {s(S_WAVE)}, 5, v2
v_lshlrev_b32 v2, 10, v2
v_lshrrev_b32 v3, 4, {v(LANE)}
v_and_b32 v4, 7, {v(LANE)}
v_xor_b32 v3, v3, v4
v_lshl_add_u32 {v(XV)}, v3, 4, v2
v_xor_b32 v5, 64, {v(XV)}
v_add_u32 {v(XV+1)}, {8192-1024}, v5
v_add_u32 {v(XV+2)}, {2*(8192-1024)}, {v(XV)}
v_add_u32 {v(XV+3)}, {3*(8192-1024)}, v5
v_lshlrev_b32 {v(L16)}, 4, {v(LANE)}""")
        e.emit(f"""s_lshl_b32 {s(S_TX)}, {s(S_RB)}, 17
s_mov_b32 {s(R_X+2)}, 0x20000
s_mov_b32 {s(R_X+3)}, 0x20000
s_mov_b32 {s(R_W+3)}, 0x20000
s_add_u32 {s(R_X)}, {s(P_X)}, {s(S_TX)}
s_addc_u32 {s(R_X+1)}, {s(P_X+1)}, 0
s_cmp_eq_u32 {s(S_TYPE)}, 1
s_cbranch_scc1 L_typeQ""")

    def setup1(self, typ):
        o = []
        if typ == "K":
            o += I(f"""s_lshl_b32 {s(S_TX)}, {s(S_M)}, 7
s_lshl_b32 {s(S_TW)}, {s(S_WR)}, 10
s_add_u32 {s(S_TX)}, {s(S_TX)}, {s(S_TW)}
s_add_u32 {s(S_TX)}, {s(S_TX)}, 1024
s_add_u32 {s(R_W)}, {s(P_WQKV)}, {s(S_TX)}
s_addc_u32 {s(R_W+1)}, {s(P_WQKV+1)}, 0
s_sub_u32 {s(R_W+2)}, {512*3072}, {s(S_TX)}""")
            o += self.wv_full(3072)
        else:
            o += I(f"""s_cmp_eq_u32 {s(S_WR)}, 0
s_cselect_b32 {s(R_W)}, {s(P_WG)}, {s(P_WU)}
s_cselect_b32 {s(R_W+1)}, {s(P_WG+1)}, {s(P_WU+1)}
s_lshl_b32 {s(S_TX)}, {s(S_M)}, 7
s_add_u32 {s(S_TX)}, {s(S_TX)}, {12*128}
s_add_u32 {s(R_W)}, {s(R_W)}, {s(S_TX)}
s_addc_u32 {s(R_W+1)}, {s(R_W+1)}, 0
s_sub_u32 {s(R_W+2)}, {512*3584}, {s(S_TX)}""")
            o += self.wv_full(3584)
        return o

    def setup2(self, typ):
        o = []
        A = lambda t: o.extend(I(t))
        A(f"""s_lshl_b32 {s(S_TX)}, {s(S_ROT)}, 7
v_add_u32 v1, {s(S_TX)}, {v(L16)}
v_and_b32 v1, 1023, v1
s_lshl_b32 {s(S_TX)}, {s(S_M)}, 11
s_lshl_b32 {s(S_TW)}, {s(S_WR)}, 10
s_add_u32 {s(S_TX)}, {s(S_TX)}, {s(S_TW)}
v_add_u32 v2, {s(S_TX)}, {v(L16)}
s_add_u32 {s(S_TW)}, {s(S_TW)}, {L_CP}
s_cmp_eq_u32 {s(S_WR)}, {s(S_WC)}
s_cselect_b64 vcc, -1, 0
s_cselect_b32 {s(P_BX)}, {s(P_GW)}, {s(P_WPHI)}
s_cselect_b32 {s(P_BX+1)}, {s(P_GW+1)}, {s(P_WPHI+1)}
s_cselect_b32 m0, {L_CG}, {s(S_TW)}
v_cndmask_b32 v1, v2, v1, vcc""")
        self.cdma = Ins(f"global_load_lds_dwordx4 v1, {s(P_BX,2)}")
        o.append(self.cdma)
        A(f"""s_mov_b32 {s(R_WS)}, {s(P_WS)}
s_mov_b32 {s(R_WS+1)}, {s(P_WS+1)}
s_mov_b32 {s(R_WS+2)}, {WS_SIZE}
s_mov_b32 {s(R_WS+3)}, 0x20000
s_mov_b32 {s(R_DBG)}, {s(P_DBG)}
s_mov_b32 {s(R_DBG+1)}, {s(P_DBG+1)}
s_mov_b32 {s(R_DBG+2)}, 256
s_mov_b32 {s(R_DBG+3)}, 0x20000""")
        A(f"""s_or_b32 {s(S_RT)}, {s(S_RT)}, 1
s_or_b32 {s(S_RT+1)}, {s(S_RT+1)}, 0x80000000
v_mov_b32 v4, {s(S_RT)}
v_mov_b32 v5, {s(S_RT+1)}
v_lshl_add_u32 v3, s2, 8, v0
v_lshlrev_b32 v3, 8, v3
buffer_store_dwordx2 v[4:5], v3, {s(R_DBG,4)}, 0 offen sc1""")
        A(f"""v_mov_b32 v6, 0
v_lshlrev_b32 v7, 2, v0
v_add_u32 v7, {L_CZ}, v7""")
        self.zw = Ins("ds_write_b32 v7, v6")
        o.append(self.zw)
        A(f"""s_lshl_b32 {s(S_TX)}, {s(S_RB)}, 4
s_add_u32 {s(S_TX)}, {s(S_TX)}, {s(S_M)}
s_lshl_b32 {s(S_TX)}, {s(S_TX)}, 7
s_add_u32 {s(S_TX)}, {s(S_TX)}, {WS_FL + (1024 if typ == 'Q' else 0)}
v_mov_b32 v8, {OOB}
v_mov_b32 v9, {s(S_TX)}
v_cmp_eq_u32 vcc, 0, v0
v_mov_b32 {v(VK1)}, {hex(f2u(K1))}
v_mov_b32 {v(VL2E)}, {hex(f2u(LOG2E))}
v_cndmask_b32 {v(FLOFF)}, v8, v9, vcc""")
        for i in range(2, 8):
            A(f"s_add_u32 {s(S_CH+i)}, {s(S_ROT)}, {i}\ns_and_b32 {s(S_CH+i)}, {s(S_CH+i)}, 7")
        A(f"s_cmp_eq_u32 {s(S_WC if typ == 'K' else S_WR)}, 0")
        for i in range(4):
            A(f"s_cselect_b32 {s(S_CH3+i)}, {s(S_CH+2*i)}, {s(S_CH+2*i+1)}")
        A(f"""v_lshrrev_b32 v10, 5, {v(LANE)}
v_bfe_u32 v11, {v(LANE)}, 4, 1
v_bfe_u32 v12, {v(LANE)}, 2, 2
v_and_b32 v13, 3, {v(LANE)}
v_and_b32 v14, 31, {v(LANE)}""")
        A(f"""v_bfe_u32 v15, {v(LANE)}, 1, 3
v_xor_b32 v15, v15, v10
v_lshlrev_b32 v15, 4, v15
v_lshl_add_u32 v15, v14, 7, v15
s_lshl_b32 {s(S_TX)}, {s(S_WAVE)}, 12
s_add_u32 {s(S_TX)}, {s(S_TX)}, {L_X}
v_add_u32 {v(XA)}, {s(S_TX)}, v15""")
        for ks in range(4):
            for rt in range(2):
                if ks or rt:
                    A(f"v_xor_b32 {v(XA+ks*2+rt)}, {ks*32 + rt*4096}, {v(XA)}")
        A(f"""v_lshlrev_b32 v16, 3, v13
v_lshl_add_u32 v16, v11, 5, v16
v_lshrrev_b32 v17, 1, v12
v_xor_b32 v17, {s(S_WC)}, v17
v_lshl_add_u32 v17, v17, 6, v16
v_lshl_add_u32 v18, v10, 3, v12
v_lshl_add_u32 {v(WA)}, v18, 7, v17""")
        if typ == "K":
            A(f"""v_xor_b32 v19, {s(S_WC)}, v11
v_lshlrev_b32 v19, 5, v19
v_lshl_add_u32 v19, v13, 3, v19
v_lshl_add_u32 v19, v18, 6, v19
v_lshl_add_u32 {v(WA3)}, v11, 13, v19""")
        A(f"""v_lshl_add_u32 v18, v10, 2, v12
v_lshl_add_u32 v19, v18, 7, v17
v_add_u32 {v(BA)}, {s(S_W8K)}, v19
v_xor_b32 {v(BA+1)}, 64, {v(BA)}
v_add_u32 {v(BA+2)}, 0x10000, {v(BA)}
v_add_u32 {v(BA+3)}, 0x10000, {v(BA+1)}
v_add_u32 {v(BA+4)}, 0x20000, {v(BA)}
v_add_u32 {v(BA+5)}, 0x20000, {v(BA+1)}""")
        A(f"""v_lshrrev_b32 v19, 1, v13
v_lshl_add_u32 v19, v11, 1, v19
v_lshlrev_b32 v19, 3, v19
v_lshl_add_u32 v19, v18, 5, v19
s_lshl_b32 {s(S_TX)}, {s(S_WC)}, 10
s_add_u32 {s(S_TX)}, {s(S_TX)}, {L_CP}
v_add_u32 {v(T)}, {s(S_TX)}, v19
v_and_b32 v19, 1, v12
v_mul_u32_u24 v19, 0x8000, v19
v_lshl_or_b32 {v(T+1)}, v19, 16, v19""")
        A(f"""v_xor_b32 v19, v12, v11
v_and_b32 v19, 1, v19
v_lshlrev_b32 v19, 10, v19
v_lshl_add_u32 v19, v10, 4, v19
v_add_u32 {v(GAD)}, {L_CG}, v19""")
        A(f"""v_lshl_add_u32 {v(HV)}, {s(S_WC)}, 10, {v(L16)}
v_xor_b32 {v(HV+1)}, 1024, {v(HV)}
v_lshl_add_u32 {v(AV)}, {s(S_WR)}, 10, {v(L16)}
v_xor_b32 {v(AV+1)}, 1024, {v(AV)}""")
        l2 = 0 if typ == "K" else 20
        A(f"""s_cmp_eq_u32 {s(S_WR)}, 0
s_cselect_b32 {s(S_W3B)}, {s(P_WG)}, {s(P_WU)}
s_cselect_b32 {s(S_W3B+1)}, {s(P_WG+1)}, {s(P_WU+1)}
s_lshl_b32 {s(S_TX)}, {s(S_M)}, 7
s_add_u32 {s(S_TW)}, {s(S_TX)}, {l2*128}
s_add_u32 {s(S_W2B)}, {s(S_W3B)}, {s(S_TW)}
s_addc_u32 {s(S_W2B+1)}, {s(S_W3B+1)}, 0
s_sub_u32 {s(S_W2N)}, {512*3584}, {s(S_TW)}""")
        if typ == "K":
            A(f"""s_lshl_b32 {s(S_TW)}, {s(S_M)}, 6
s_add_u32 {s(S_TW)}, {s(S_TW)}, {8*128}
s_add_u32 {s(S_W3B)}, {s(S_W3B)}, {s(S_TW)}
s_addc_u32 {s(S_W3B+1)}, {s(S_W3B+1)}, 0
s_sub_u32 {s(S_W3N)}, {512*3584}, {s(S_TW)}""")
        else:
            A(f"""s_add_u32 {s(S_W3B)}, {s(P_WQKV)}, {s(S_TX)}
s_addc_u32 {s(S_W3B+1)}, {s(P_WQKV+1)}, 0
s_sub_u32 {s(S_W3N)}, {512*3072}, {s(S_TX)}""")
        A(f"""s_lshl_b32 {s(S_TX)}, {s(S_RB)}, 1
s_add_u32 {s(S_TX)}, {s(S_TX)}, {s(S_WR)}
s_mul_i32 {s(S_TX)}, {s(S_TX)}, {36*8192}
s_lshl_b32 {s(S_TW)}, {s(S_M)}, 13
s_lshl_b32 {s(S_KV)}, {s(S_WC)}, 12
s_add_u32 {s(S_TW)}, {s(S_TW)}, {s(S_KV)}
s_add_u32 {s(S_TW)}, {s(S_TW)}, {s(S_TX)}""")
        if typ == "K":
            A(f"""s_mov_b32 {s(S_H2)}, {s(S_TW)}
s_lshl_b32 {s(S_TW)}, {s(S_M)}, 12
s_lshl_b32 {s(S_KV)}, {s(S_WC)}, 11
s_add_u32 {s(S_TW)}, {s(S_TW)}, {s(S_KV)}
s_add_u32 {s(S_TW)}, {s(S_TW)}, {s(S_TX)}
s_add_u32 {s(S_H3)}, {s(S_TW)}, {8*8192}""")
        else:
            A(f"""s_add_u32 {s(S_H1)}, {s(S_TW)}, {12*8192}
s_add_u32 {s(S_H2)}, {s(S_TW)}, {20*8192}
s_add_u32 {s(S_H3)}, {s(S_TW)}, {28*8192}""")
        A(f"""s_lshl_b32 {s(S_KV)}, {s(S_M)}, 2
s_lshl_b32 {s(S_TW)}, {s(S_WC)}, 1
s_add_u32 {s(S_KV)}, {s(S_KV)}, {s(S_TW)}
s_add_u32 {s(S_KV)}, {s(S_KV)}, {s(S_WR)}""")
        A(f"""s_lshl_b32 {s(S_TX)}, {s(S_T0)}, 2
s_add_u32 {s(S_TX)}, {s(S_TX)}, {s(S_T1)}
s_mul_i32 {s(S_AB)}, {s(S_TX)}, {36*8192}
s_lshr_b32 {s(S_PB)}, {s(S_TX)}, 1
s_lshl_b32 {s(S_PB)}, {s(S_PB)}, 11
s_add_u32 {s(S_PB)}, {s(S_PB)}, {WS_FL}
s_lshl_b32 {s(S_TW)}, {s(S_T2)}, 7
s_add_u32 {s(R_WD)}, {s(P_WD)}, {s(S_TW)}
s_addc_u32 {s(R_WD+1)}, {s(P_WD+1)}, 0
s_sub_u32 {s(R_WD+2)}, {1792*1024}, {s(S_TW)}
s_mov_b32 {s(R_WD+3)}, 0x20000
s_add_u32 {s(R_WO)}, {s(P_WO)}, {s(S_TW)}
s_addc_u32 {s(R_WO+1)}, {s(P_WO+1)}, 0
s_sub_u32 {s(R_WO+2)}, {512*1024}, {s(S_TW)}
s_mov_b32 {s(R_WO+3)}, 0x20000
s_lshl_b32 {s(S_TX)}, {s(S_TX)}, 16
s_add_u32 {s(S_TX)}, {s(S_TX)}, {s(S_TW)}
s_add_u32 {s(R_OUT)}, {s(P_OUT)}, {s(S_TX)}
s_addc_u32 {s(R_OUT+1)}, {s(P_OUT+1)}, 0
s_sub_u32 {s(R_OUT+2)}, {2048*1024}, {s(S_TX)}
s_mov_b32 {s(R_OUT+3)}, 0x20000
s_add_u32 {s(S_TW)}, {s(S_T1)}, {s(S_T2)}
s_lshl_b32 {s(S_L0)}, {s(S_WAVE)}, 1
s_add_u32 {s(S_L0)}, {s(S_L0)}, {s(S_TW)}
s_add_u32 {s(S_L1)}, {s(S_L0)}, 1
s_add_u32 {s(S_L4)}, {s(S_WAVE)}, {s(S_TW)}
v_and_b32 v19, 1, {v(LANE)}
v_add_u32 v20, {s(S_L0)}, v19
v_and_b32 v20, 7, v20
v_lshlrev_b32 {v(POLL8)}, 7, v20
s_and_b32 {s(S_L0)}, {s(S_L0)}, 7
s_and_b32 {s(S_L1)}, {s(S_L1)}, 7
s_and_b32 {s(S_L4)}, {s(S_L4)}, 3
v_lshl_add_u32 v20, {s(S_L4)}, 1, v19
v_lshlrev_b32 {v(POLL4)}, 7, v20""")
        return o

    def frag_reads(self, typ, G):
        c, gi = divmod(G, 4)
        F = WF + (G & 1) * 8
        slot = L_W + (c % 4) * 16384
        o = []
        for tile in range(2):
            for h in range(2):
                if c < 16:
                    ad, off = WA, slot + tile * 8192 + gi * 2048 + h * 512
                elif typ == "Q":
                    ad, off = WA, slot + (2 * gi + tile) * 2048 + h * 512
                else:
                    ad, off = WA3, slot + (2 * gi + tile) * 1024 + h * 256
                o.append(Ins(f"ds_read_b64_tr_b16 {v(F+tile*4+h*2,2)}, {v(ad)} offset:{off}"))
        return o

    def x_reads(self, G):
        c, gi = divmod(G, 4)
        o = [Ins(f"ds_read_b128 {a_((G*2+rt)*4,4)}, {v(XA+gi*2+rt)} offset:{(c%3)*16384}") for rt in range(2)]
        o.append(Ins(f"ds_read_b128 {v(GF+(G&1)*4,4)}, {v(GAD)} offset:{G*32}"))
        return o

    def mfmas(self, typ, G):
        c, gi = divmod(G, 4)
        F = WF + (G & 1) * 8
        o = []
        allr = [f"v{F+i}" for i in range(8)]
        if c < 8:
            allr += [f"a{G*8+i}" for i in range(8)] + [f"v{GF+(G&1)*4+i}" for i in range(4)]
        for tile in range(2):
            for rt in range(2):
                if c < 16:
                    xs = G % 32
                    acc = (ACCA if c < 8 else ACCB) + tile * 32 + rt * 16
                    first = xs == 0
                else:
                    xs = (G - 64) * 2 + tile
                    acc = ACCA + rt * 16
                    first = xs == 0
                X = a_((xs * 2 + rt) * 4, 4)
                W = v(F + tile * 4, 4)
                A_, B_ = (X, W) if (typ == "K" and c < 8 and tile == 1) else (W, X)
                C = "0" if first else v(acc, 16)
                o.append(Ins(f"v_mfma_f32_32x32x16_bf16 {v(acc,16)}, {A_}, {B_}, {C}", extra_reads=allr if not o else ()))
        if c < 8:
            C = "0" if G == 0 else v(GA, 4)
            o.append(Ins(f"v_mfma_f32_16x16x32_bf16 {v(GA,4)}, {v(GF+(G&1)*4,4)}, {a_(G*8,4)}, {C}"))
        return o

    def phase1(self, typ, e):
        cfg = self.cfg
        toks = {}
        e.emit(self.setup1(typ))
        for c in range(2):
            p, d = self.dma_x(c); e.emit(p); e.emit(d)
            p2, d2 = self.dma_w(typ, c); e.emit(p2); e.emit(d2)
            toks[c] = d + d2
            if c == 0:
                e.emit(self.setup2(typ))
        e.emit(self.stamp(0))
        e.emit([WaitVM(*toks[0], self.cdma), WaitLDS(self.zw), Ins("s_barrier")])
        e.emit(self.stamp(1))
        e.emit(self.frag_reads(typ, 0) + self.x_reads(0))

        plan = {b: [] for b in range(0, 21)}
        for c in range(2, 8):
            plan[c - 2].append(("x", c))
        for c in range(2, 9):
            plan[c - 2].append(("w", c))
        for c in range(9, 20):
            plan[c - 3].append(("w", c))
        bplan = {"Q": [(0, 4, 8), (1, 2, 10), (2, 3, 12), (3, 0, 18)], "K": [(0, 4, 8), (1, 2, 17), (2, 3, 18), (3, 0, 19)]}[typ]
        self.bquad = {}
        self.btok = {}
        for (b, q, st) in bplan:
            self.bquad[b] = q
            plan[st].append(("b", b, q, 0))
            plan[min(st + (1 if st < 17 else 0), 19)].append(("b", b, q, 1))
        pre_bar = {b: [] for b in range(0, 21)}
        post_bar = {b: [] for b in range(0, 21)}
        fillers = []

        nld = self.nonce_issue()
        f0 = []
        for en in range(2):
            for h in range(2):
                f0.append(Ins(f"ds_read_b64_tr_b16 {v(PHI+en*4+h*2,2)}, {v(T)} offset:{en*512+h*256}"))
        f0.append(Hold("g8"))
        f0 += [Ins(f"v_xor_b32 {v(PHI+i)}, {v(T+1)}, {v(PHI+i)}") for i in range(8)]
        f0 += [Hold("g16"), nld, Hold("g27")] + self.bv_setup() + [Hold("g29")] + self.nonce_check(nld)
        fillers.append(("g4", "g31", f0))
        gx = I(f"""v_lshlrev_b32 {v(T+17)}, 2, {v(LANE)}
v_lshl_add_u32 {v(T+17)}, {s(S_WAVE)}, 8, {v(T+17)}
v_add_u32 {v(T+17)}, {L_GX}, {v(T+17)}""")
        gw = Ins(f"ds_write_b32 {v(T+17)}, {v(GA)}")
        gx += [gw] + I(f"v_xor_b32 {v(T+17)}, 256, {v(T+17)}") + self.gate_consts(GA, 0)
        fillers.append(("g32", "g35", gx))
        pre_bar[9].append(WaitLDS(gw))
        gr = [Ins(f"ds_read_b32 {v(GA+1)}, {v(T+17)}"), Hold("g37")] + self.gate_consts(GA + 1, 1)
        fillers.append(("g35", "g39", gr))

        if typ == "Q":
            o0, s0 = self.gu_full(ACCA, S_H1, rts=(0,))
            o1, s1 = self.gu_full(ACCA, S_H1, rts=(1,))
            fillers.append(("g35", "g55", o0 + [Hold("g39")] + o1))
            pre_bar[16].append(WaitVM(*(s0 + s1)))
            post_bar[16].append(self.flag_store(0))
        else:
            KB = T + 20
            D = T + 36
            AD = T + 44
            fk = []
            for rt in range(2):
                for en in range(2):
                    b0 = ACCA + rt * 16 + en * 8
                    fk += [Ins(f"v_cvt_pk_bf16_f32 {v(KB+(rt*2+en)*4+i)}, {v(b0+2*i)}, {v(b0+2*i+1)}") for i in range(4)]

            def pk(u):
                return Ins(f"v_mfma_f32_32x32x16_bf16 {v(ACCA+(u&1)*16,16)}, {v(PHI+(u&1)*4,4)}, {v(KB+u*4,4)}, 0")
            fk.append(pk(0))
            fk += I(f"""s_lshl_b32 {s(S_T0)}, {s(S_WC)}, 1
s_add_u32 {s(S_T0)}, {s(S_T0)}, {s(S_WR)}
s_mul_i32 {s(S_T0)}, {s(S_T0)}, {4*1040}
s_add_u32 {s(S_T0)}, {s(S_T0)}, {L_PV}
v_add_u32 {v(AD)}, {s(S_T0)}, {v(L16)}
v_and_b32 {v(AD+1)}, 3, {v(LANE)}
v_mul_u32_u24 {v(AD+1)}, 1040, {v(AD+1)}
v_add_u32 {v(AD+1)}, {s(S_T0)}, {v(AD+1)}""")
            wts = []
            for rt in range(2):
                for t in range(2):
                    b0 = ACCA + 32 + rt * 16 + t * 8
                    d0 = T + (t & 1) * 4
                    fk += [Ins(f"v_cvt_pk_bf16_f32 {v(d0+i)}, {v(b0+2*i)}, {v(b0+2*i+1)}") for i in range(4)]
                    w_ = Ins(f"ds_write_b128 {v(AD)}, {v(d0,4)} offset:{(rt*2+t)*1040}")
                    fk.append(w_); wts.append(w_)
            fk += [Ins(f"v_mov_b32 {v(T+8+i)}, 0x3f803f80") for i in range(4)]
            w_ = Ins(f"ds_write_b128 {v(AD+1)}, {v(T+8,4)} offset:1024")
            fk.append(w_); wts.append(w_)
            fk.append(pk(1))
            fk += I(f"""v_lshrrev_b32 {v(AD)}, 5, {v(LANE)}
v_lshlrev_b32 {v(AD)}, 1, {v(AD)}
v_bfe_u32 {v(AD+1)}, {v(LANE)}, 1, 2
v_xor_b32 {v(AD)}, {v(AD)}, {v(AD+1)}
v_lshlrev_b32 {v(AD)}, 4, {v(AD)}
v_and_b32 {v(AD+1)}, 31, {v(LANE)}
v_lshl_add_u32 {v(AD)}, {v(AD+1)}, 6, {v(AD)}
s_lshl_b32 {s(S_T0)}, {s(S_WC)}, 14
s_lshl_b32 {s(S_T1)}, {s(S_WR)}, 12
s_add_u32 {s(S_T0)}, {s(S_T0)}, {s(S_T1)}
s_add_u32 {s(S_T0)}, {s(S_T0)}, {L_PK}
v_add_u32 {v(AD)}, {s(S_T0)}, {v(AD)}
v_xor_b32 {v(AD+1)}, 16, {v(AD)}""")
            for u in range(4):
                rt, en = divmod(u, 2)
                fk += self.softmax(ACCA + (u & 1) * 16, D, T + 12)
                if u + 2 < 4:
                    fk.append(pk(u + 2))
                for q in range(2):
                    w_ = Ins(f"ds_write_b128 {v(AD+q)}, {v(D+q*4,4)} offset:{en*8192+rt*2048}")
                    fk.append(w_); wts.append(w_)
            fk += I(f"""v_bfe_u32 {v(T)}, {v(LANE)}, 4, 1
v_and_b32 {v(T+1)}, 1, {v(LANE)}
v_lshl_add_u32 {v(T)}, {v(T+1)}, 1, {v(T)}
v_lshrrev_b32 {v(T+1)}, 5, {v(LANE)}
v_bfe_u32 {v(T+2)}, {v(LANE)}, 2, 2
v_lshl_add_u32 {v(T+2)}, {v(T+1)}, 2, {v(T+2)}
v_lshrrev_b32 {v(T+3)}, 1, {v(T+2)}
v_xor_b32 {v(T)}, {v(T)}, {v(T+3)}
v_lshlrev_b32 {v(T)}, 4, {v(T)}
v_lshl_add_u32 {v(T)}, {v(T+2)}, 6, {v(T)}
v_bfe_u32 {v(T+3)}, {v(LANE)}, 1, 1
v_lshl_add_u32 {v(T)}, {v(T+3)}, 3, {v(T)}
s_lshl_b32 {s(S_T0)}, {s(S_WC)}, 14
s_lshl_b32 {s(S_T1)}, {s(S_WR)}, 13
s_add_u32 {s(S_T0)}, {s(S_T0)}, {s(S_T1)}
s_add_u32 {s(S_T0)}, {s(S_T0)}, {L_PK}
v_add_u32 {v(AD+2)}, {s(S_T0)}, {v(T)}
v_lshl_add_u32 {v(T)}, {s(S_WR)}, 8, {v(L16)}
v_mov_b32 {v(T+1)}, 1024
v_and_b32 {v(T+2)}, 16, {v(LANE)}
v_cmp_eq_u32 vcc, 0, {v(T+2)}
s_mul_i32 {s(S_T0)}, {s(S_WC)}, {8*1040}
s_add_u32 {s(S_T0)}, {s(S_T0)}, {L_PV}
v_cndmask_b32 {v(T)}, {v(T+1)}, {v(T)}, vcc
v_add_u32 {v(AD+3)}, {s(S_T0)}, {v(T)}""")
            fillers.append(("g35", "g59", fk))
            pre_bar[15].append(WaitLDS(*wts))
            KV = ACCA + 32
            fv = []

            def kvr(u):
                b0 = T + (u & 3) * 8
                return [Ins(f"ds_read_b64_tr_b16 {v(b0,2)}, {v(AD+2)} offset:{u*1024}"),
                        Ins(f"ds_read_b64_tr_b16 {v(b0+2,2)}, {v(AD+2)} offset:{u*1024+512}"),
                        Ins(f"ds_read_b128 {v(b0+4,4)}, {v(AD+3)} offset:{u*1040}")]
            for u in range(3):
                fv += kvr(u)
            kvlast = None
            for u in range(8):
                if u + 3 < 8:
                    kvlast = kvr(u + 3)
                    fv += kvlast
                b0 = T + (u & 3) * 8
                fv.append(Ins(f"v_mfma_f32_32x32x16_bf16 {v(KV,16)}, {v(b0,4)}, {v(b0+4,4)}, {'0' if u == 0 else v(KV,16)}"))
            fv += I(f"""v_lshlrev_b32 {v(AD)}, 4, {v(LANE)}
v_and_b32 {v(AD+1)}, 15, {v(LANE)}
v_mov_b32 {v(AD+2)}, {OOB}
v_cmp_eq_u32 vcc, 0, {v(AD+1)}
s_lshl_b32 {s(S_T0)}, {s(S_KV)}, 4
s_add_u32 {s(S_T0)}, {s(S_T0)}, {s(S_RB)}
s_lshl_b32 {s(S_T0)}, {s(S_T0)}, 10
s_add_u32 {s(S_T0)}, {s(S_T0)}, {WS_KVX}
v_cndmask_b32 {v(AD)}, {v(AD+2)}, {v(AD)}, vcc
s_lshl_b32 {s(S_T1)}, {s(S_KV)}, 6
s_add_u32 {s(S_T1)}, {s(S_T1)}, {s(S_RB)}
s_lshl_b32 {s(S_T1)}, {s(S_T1)}, 4
s_add_u32 {s(S_T1)}, {s(S_T1)}, {WS_KVZ}""")
            fv += [Ins(f"v_cvt_pk_bf16_f32 {v(D+i)}, {v(KV+2*i)}, {v(KV+2*i+1)}") for i in range(8)]
            fv += [Ins(f"v_permlane16_swap_b32 {v(D+i)}, {v(D+4+i)}") for i in range(4)]
            sx = Ins(f"buffer_store_dwordx4 {v(D,4)}, {v(L16)}, {s(R_WS,4)}, {s(S_T0)} offen sc1")
            sz = Ins(f"buffer_store_dwordx4 {v(D+4,4)}, {v(AD)}, {s(R_WS,4)}, {s(S_T1)} offen sc1")
            fv += [sx, sz]
            fillers.append(("g59", "g65", fv))
            pre_bar[17].append(WaitLDS(*kvlast))
            pre_bar[18].append(WaitVM(sx, sz))
            post_bar[18].append(self.flag_store(0))
        o2, s2_ = self.gu_full(ACCB, S_H2)
        fillers.append(("g65", "g80", o2))
        self.st2 = s2_

        main = []
        pend = []

        def add_plan(b):
            for it in plan[b]:
                if it[0] == "x":
                    p, d = self.dma_x(it[1]); toks.setdefault(it[1], []).extend(d)
                elif it[0] == "w":
                    p, d = self.dma_w(typ, it[1]); toks.setdefault(it[1], []).extend(d)
                else:
                    p, d = self.dma_b(it[1], it[2], it[3]); self.btok.setdefault(it[1], []).extend(d)
                pend.append(p + [d[0]])
                pend.extend([[x] for x in d[1:]])
        add_plan(0)
        for G in range(80):
            c, gi = divmod(G, 4)
            mm = self.mfmas(typ, G)
            main.append(Mark(f"g{G}"))
            if G in (32, 64):
                main += self.stamp(2 if G == 32 else 3)
            main.append(mm[0])
            if gi == 3:
                assert not pend, (G, len(pend))
                if c + 1 < 20:
                    main.append(WaitVM(*toks[c + 1]))
                main += pre_bar[c + 1]
                main.append(Ins("s_barrier"))
                main += post_bar[c + 1]
                add_plan(c + 1)
            if G + 1 < 80:
                main += self.frag_reads(typ, G + 1)
            for k in range(1, len(mm)):
                main.append(mm[k])
                if k == 1 and G + 1 < 32:
                    main += self.x_reads(G + 1)
                    continue
                if k <= 3 and pend:
                    main += pend.pop(0)
                    if G < 4 and pend and k == 3:
                        main += pend.pop(0)
        assert not pend
        main.append(Mark("g80"))
        e.emit(interleave(main, fillers, cfg.budget, self.log))

    def tail_k(self, e):
        sts = []
        for rt in range(2):
            x, st = self.gu_frag(ACCA + rt * 16, ACCA + rt * 16 + 8, rt, S_H3, 0, d0=T + 8 + 4 * rt)
            e.emit(x); sts.append(st)
            if rt == 0:
                e.emit([WaitVM(*self.st2), Ins("s_barrier"), self.flag_store(1)])
        self.b_more(e, [(4, 1)])
        e.emit([WaitVM(*sts), Ins("s_barrier"), self.flag_store(2)])

    def b_more(self, e, lst):
        for (b, q) in lst:
            self.bquad[b] = q
            for h in range(2):
                p, d = self.dma_b(b, q, h)
                self.btok.setdefault(b, []).extend(d)
                e.emit(p + d)

    def tail_q(self, e):
        QB = T + 20
        PQ = WF
        e.emit(f"""v_and_b32 {v(T+16)}, 15, {v(LANE)}
v_lshlrev_b32 {v(T+16)}, 11, {v(T+16)}
s_lshl_b32 {s(S_T2)}, {s(S_M)}, 7
s_add_u32 {s(S_T2)}, {s(S_T2)}, {WS_FL}""")
        for rt in range(2):
            for en in range(2):
                b0 = ACCA + rt * 16 + en * 8
                e.emit([Ins(f"v_cvt_pk_bf16_f32 {v(QB+(rt*2+en)*4+i)}, {v(b0+2*i)}, {v(b0+2*i+1)}") for i in range(4)])
        for u in range(4):
            e.emit(f"v_mfma_f32_32x32x16_bf16 {v(ACCA+u*16,16)}, {v(PHI+(u&1)*4,4)}, {v(QB+u*4,4)}, 0")
        e.emit(self.softmax(ACCA, PQ, T + 12))
        e.emit([WaitVM(*self.st2), Ins("s_barrier"), self.flag_store(1)])
        pl = self.poll_issue(T + 16, R_WS, s(S_T2), 0)
        e.emit(pl)
        e.emit(self.softmax(ACCA + 16, PQ + 8, T + 12))
        e.emit(self.poll_check(pl))
        e.emit(f"""s_lshl_b32 {s(S_T0)}, {s(S_KV)}, 14
s_add_u32 {s(S_T0)}, {s(S_T0)}, {WS_KVX}
s_lshl_b32 {s(S_T1)}, {s(S_KV)}, 10
s_add_u32 {s(S_T1)}, {s(S_T1)}, {WS_KVZ}
buffer_load_dwordx4 {v(T,4)}, {v(L16)}, {s(R_WS,4)}, {s(S_T1)} offen sc1""")
        for p in range(16):
            if p and p % 4 == 0:
                e.emit(f"s_add_u32 {s(S_T0)}, {s(S_T0)}, 4096")
            e.emit(f"buffer_load_dwordx4 {v(ACCB+4*p,4)}, {v(L16)}, {s(R_WS,4)}, {s(S_T0)} offen offset:{(p&3)*1024} sc1")
        e.emit(self.softmax(ACCA + 32, PQ + 16, T + 12))
        e.emit(self.softmax(ACCA + 48, PQ + 24, T + 12))
        SEL = QB
        e.emit(f"""v_lshrrev_b32 {v(T+12)}, 5, {v(LANE)}
v_lshlrev_b32 {v(T+12)}, 2, {v(T+12)}
v_and_b32 {v(T+13)}, 31, {v(LANE)}
v_sub_u32 {v(T+12)}, {v(T+13)}, {v(T+12)}
v_and_b32 {v(T+13)}, 1, {v(T+12)}
v_lshlrev_b32 {v(T+13)}, 4, {v(T+13)}
v_mov_b32 {v(T+14)}, 0x3f80
v_lshlrev_b32 {v(T+13)}, {v(T+13)}, {v(T+14)}
v_and_b32 {v(T+12)}, -2, {v(T+12)}""")
        for jj in range(4):
            e.emit(f"v_cmp_eq_u32 vcc, {(2*jj & 3) + 8*(jj >> 1)}, {v(T+12)}\nv_cndmask_b32 {v(SEL+jj)}, 0, {v(T+13)}, vcc")
        XS = ACCA
        for p in range(16):
            e.emit(f"v_mfma_f32_32x32x16_bf16 {v(XS,16)}, {v(SEL,4)}, {v(ACCB+4*p,4)}, {'0' if p == 0 else v(XS,16)}")
            if p == 0:
                Z = T + 4
                for i in range(4):
                    e.emit(f"v_lshlrev_b32 {v(Z+2*i)}, 16, {v(T+i)}\nv_and_b32 {v(Z+2*i+1)}, 0xffff0000, {v(T+i)}")
            if 1 <= p <= 8:
                sh = (8, 4, 2, 1)[(p - 1) // 2]
                for i in range(4):
                    r = Z + ((p - 1) & 1) * 4 + i
                    e.emit(f"v_add_f32 {v(r)}, {v(r)}, {v(r)} row_ror:{sh} row_mask:0xf bank_mask:0xf")
        F = QB + 4
        e.emit([Ins(f"v_cvt_pk_bf16_f32 {v(F+4+i)}, {v(Z+2*i)}, {v(Z+2*i+1)}") for i in range(4)])
        e.emit(f"""s_lshl_b32 {s(S_T0)}, {s(S_WC)}, 12
s_add_u32 {s(S_T0)}, {s(S_T0)}, {L_FX}
v_add_u32 {v(T+12)}, {s(S_T0)}, {v(L16)}
v_lshl_add_u32 {v(T+13)}, {s(S_WR)}, 11, {v(T+12)}""")
        e.emit([Ins(f"v_cvt_pk_bf16_f32 {v(F+i)}, {v(XS+2*i)}, {v(XS+2*i+1)}") for i in range(4)])
        e.emit([Ins(f"v_permlane16_swap_b32 {v(F+i)}, {v(F+4+i)}") for i in range(4)])
        w0 = Ins(f"ds_write_b128 {v(T+13)}, {v(F,4)}")
        w1 = Ins(f"ds_write_b128 {v(T+13)}, {v(F+4,4)} offset:1024")
        e.emit([w0, w1, WaitLDS(w0, w1), Ins("s_barrier")])
        FF = T + 32
        rd = [Ins(f"ds_read_b128 {v(FF+4*i,4)}, {v(T+12)} offset:{i*1024}") for i in range(4)]
        e.emit(rd)
        for u in range(4):
            en = u & 1
            for t in range(2):
                e.emit(f"v_mfma_f32_32x32x16_bf16 {v(ACCA+u*16,16)}, {v(FF+(en*2+t)*4,4)}, {v(PQ+u*8+t*4,4)}, {'0' if t == 0 else v(ACCA+u*16,16)}")
        sts = []
        for u in range(4):
            rt, en = divmod(u, 2)
            O = ACCA + u * 16
            d0 = T + 4 * u
            e.emit(f"""v_add_f32 {v(O+8)}, {hex(f2u(1e-6))}, {v(O+8)}
v_rcp_f32 {v(O+8)}, {v(O+8)}
v_mul_f32 {v(O+8)}, {v(O+8)}, {v(GG+rt)}""")
            e.emit([Ins(f"v_mul_f32 {v(O+i)}, {v(O+i)}, {v(O+8)}") for i in range(8)])
            e.emit([Ins(f"v_cvt_pk_bf16_f32 {v(d0+i)}, {v(O+2*i)}, {v(O+2*i+1)}") for i in range(4)])
            st = Ins(f"buffer_store_dwordx4 {v(d0,4)}, {v(HV+rt)}, {s(R_WS,4)}, {s(S_H3)} offen offset:{en*2048} sc1")
            e.emit(st); sts.append(st)
        e.emit([WaitVM(*sts), Ins("s_barrier"), self.flag_store(2)])
        self.b_more(e, [(4, 1)])

    def phase2(self, typ, e):
        ACC = ACCB
        AB = [0, 32, WF]
        polls = {0: (POLL8, 1024, 0), 2: (POLL8, 0, 8), 4: (POLL8, 1024, 8), 6: (POLL4, 0, 16), 7: (POLL8, 1024, 16)}
        nxt = 5
        for b in range(0, 4):
            e.emit(WaitVM(*self.btok[b]))
            x = self.xfer_b(b, self.bquad[b])
            e.emit(x)
            e.emit(WaitLDS(*x))
            self.b_more(e, [(nxt, self.bquad[b])]); nxt += 1

        def issue_a(b):
            if b in polls:
                vo, so, im = polls[b]
                pl = self.poll_issue(vo, R_WS, s(S_PB), so + im)
                e.emit(pl)
                e.emit(self.poll_check(pl))
            p, d = self.load_a(b, AB[b % 3])
            e.emit(p + d)
        e.emit(self.stamp(5))
        issue_a(0); issue_a(1)
        for b in range(9):
            if b + 2 < 9:
                issue_a(b + 2)
            xb = b + 4
            fill = []
            if 4 <= xb < 9:
                fill = [WaitVM(*self.btok[xb])] + self.xfer_b(xb, self.bquad[xb])
            main = [Mark("s")]
            for ks in range(4):
                for cc in range(2):
                    for rt in range(2):
                        acc = ACC + (cc + 2 * rt) * 16
                        C = "0" if (b == 0 and ks == 0) else v(acc, 16)
                        main.append(Ins(f"v_mfma_f32_32x32x16_bf16 {v(acc,16)}, {a_((b%8)*32+(ks*2+cc)*4,4)}, {v(AB[b%3]+(ks*2+rt)*4,4)}, {C}"))
            main.append(Mark("e"))
            e.emit(interleave(main, [("s", "e", fill)] if fill else [], 8))
            if b == 1:
                e.emit(self.stamp(6))
            if b == 6:
                e.emit(self.stamp(7))
        e.emit(self.stamp(8))
        e.emit(f"v_add_u32 {v(T)}, {s(S_W8K)}, {v(L16)}")
        for q in range(1, 4):
            e.emit(f"v_xor_b32 {v(T+q)}, {q*8192}, {v(T)}")
        offs = {1: 0, 2: 4096, 3: 32768}
        e.emit(f"""v_and_b32 {v(T+4)}, 31, {v(LANE)}
v_lshl_add_u32 {v(T+4)}, {s(S_WR)}, 5, {v(T+4)}
v_lshlrev_b32 {v(T+4)}, 10, {v(T+4)}
v_lshrrev_b32 {v(T+5)}, 5, {v(LANE)}
v_lshl_add_u32 {v(T+4)}, {v(T+5)}, 4, {v(T+4)}
v_lshl_add_u32 {v(T+4)}, {s(S_WC)}, 6, {v(T+4)}""")
        ws_ = []
        for q in (2, 1, 3):
            for i in range(4):
                w_ = Ins(f"ds_write_b128 {v(T)}, {v(ACC+q*16+4*i,4)} offset:{offs[q]+i*1024}")
                e.emit(w_); ws_.append(w_)
        e.emit([WaitLDS(*ws_), Ins("s_barrier")])
        for i in range(4):
            for q in range(1, 4):
                e.emit(f"ds_read_b128 {v((q-1)*16+4*i,4)}, {v(T+q)} offset:{offs[q]+i*1024}")
        D = T + 8
        for i in range(4):
            for j in range(4):
                r = 4 * i + j
                e.emit(f"v_add_f32 {v(ACC+r)}, {v(ACC+r)}, {v(r)}")
            for j in range(4):
                r = 4 * i + j
                e.emit(f"v_add_f32 {v(16+r)}, {v(16+r)}, {v(32+r)}")
            for j in range(4):
                r = 4 * i + j
                e.emit(f"v_add_f32 {v(ACC+r)}, {v(ACC+r)}, {v(16+r)}")
            e.emit(f"v_cvt_pk_bf16_f32 {v(D+2*i)}, {v(ACC+4*i)}, {v(ACC+4*i+1)}\nv_cvt_pk_bf16_f32 {v(D+2*i+1)}, {v(ACC+4*i+2)}, {v(ACC+4*i+3)}")
            if i & 1:
                b0 = D + 2 * (i - 1)
                e.emit(f"v_permlane32_swap_b32 {v(b0)}, {v(b0+2)}\nv_permlane32_swap_b32 {v(b0+1)}, {v(b0+3)}")
                e.emit(f"buffer_store_dwordx4 {v(b0,4)}, {v(T+4)}, {s(R_OUT,4)}, 0 offen offset:{(i>>1)*32}")
        if self.cfg.prof:
            e.emit(self.stamp(9))
            e.emit("s_waitcnt vmcnt(0)")
            e.emit(self.stamp(10))
            e.emit(f"s_memrealtime {s(4+2*11,2)}\ns_waitcnt lgkmcnt(0)")
            for i in range(11):
                e.emit(f"s_sub_u32 {s(S_T0)}, {s(4+2*i)}, {s(S_ST0)}\nv_mov_b32 {v(i)}, {s(S_T0)}")
            e.emit(f"v_mov_b32 v11, {s(S_RT)}\nv_mov_b32 v12, {s(4+22)}\nv_mov_b32 v13, {s(S_TYPE)}\nv_mov_b32 v14, 0\nv_mov_b32 v15, 0")
            e.emit(f"""s_lshl_b32 {s(S_T0)}, s2, 2
s_add_u32 {s(S_T0)}, {s(S_T0)}, {s(S_WAVE)}
s_lshl_b32 {s(S_T0)}, {s(S_T0)}, 6
s_add_u32 {s(S_T0)}, {s(S_T0)}, {WS_PROF}
v_lshlrev_b32 v16, 24, {v(LANE)}""")
            for i in range(4):
                e.emit(f"buffer_store_dwordx4 {v(4*i,4)}, v16, {s(R_WS,4)}, {s(S_T0)} offen offset:{16*i}")
        if self.cfg.padto:
            e.emit(f"v_readfirstlane_b32 {s(S_T0)}, {v(NONCE)}")
            if self.cfg.chan >= 0:
                e.emit(f"""s_waitcnt lgkmcnt(0)
s_sub_u32 {s(S_T1)}, {s(S_ST0)}, {s(S_T0 if self.cfg.changlob else S_RT)}
s_max_i32 {s(S_T1)}, {s(S_T1)}, 0
s_min_i32 {s(S_T1)}, {s(S_T1)}, 5000
s_lshl_b32 {s(S_T1)}, {s(S_T1)}, 3
s_add_u32 {s(S_T0)}, {s(S_T0)}, {s(S_T1)}""")
            e.emit(f"""L_pad{typ}:
s_memrealtime s[4:5]
s_waitcnt lgkmcnt(0)
s_sub_u32 {s(S_T1)}, s4, {s(S_T0)}
s_cmp_lt_i32 {s(S_T1)}, {self.cfg.padto}
s_cbranch_scc1 L_pad{typ}""")
        if self.cfg.padcyc:
            e.emit(f"""L_pad{typ}:
s_memtime s[4:5]
s_waitcnt lgkmcnt(0)
s_sub_u32 {s(S_T1)}, s4, {s(S_ST0)}
s_cmp_lt_u32 {s(S_T1)}, {self.cfg.padcyc}
s_cbranch_scc1 L_pad{typ}""")
        e.emit("s_endpgm")

    def build(self):
        e0 = Emitter()
        self.prologue(e0)
        txt = e0.text()
        for typ in ("K", "Q"):
            e = e0.fork()
            if typ == "Q":
                e.emit("L_typeQ:")
            self.phase1(typ, e)
            e.emit(self.stamp(4))
            (self.tail_k if typ == "K" else self.tail_q)(e)
            self.phase2(typ, e)
            self.log.append(f"type {typ}: {e.stats}")
            txt += e.text()
        txt += "\n".join(self.slow) + "\nL_end:\n"
        kn = NAME + "_kernel"
        head = open("cdna_kernels/" + NAME + ".s.ref").read().split("; Override launch")[0] if False else ""
        return f"""; fused hedgehog linear attention + GEGLU gated mix (generated by work/gen.py)
; @launch grid=(256,1,1) block=(256,1,1) lds={LDS_BYTES}
.amdgcn_target "amdgcn-amd-amdhsa--gfx950"
.text
.globl {kn}
.p2align 8
.type {kn},@function
{kn}:
{txt}  s_endpgm
.section .rodata,"a"
.p2align 6
.amdhsa_kernel {kn}
  .amdhsa_next_free_vgpr 512
  .amdhsa_next_free_sgpr 102
  .amdhsa_accum_offset 256
  .amdhsa_group_segment_fixed_size 0
  .amdhsa_kernarg_size 96
  .amdhsa_user_sgpr_count 2
  .amdhsa_user_sgpr_kernarg_segment_ptr 1
  .amdhsa_system_sgpr_workgroup_id_x 1
.end_amdhsa_kernel
"""


if __name__ == "__main__":
    cfg = Cfg()
    out = sys.argv[1]
    for kv in sys.argv[2:]:
        k, val = kv.split("=")
        cur = getattr(cfg, k)
        setattr(cfg, k, val if isinstance(cur, str) else type(cur)(int(val)))
    g = Gen(cfg)
    open(out, "w").write(g.build())
    print("\n".join(g.log))
```

```python
import re

TRANS = ("v_exp_f32", "v_rcp_f32", "v_log_f32", "v_rsq_f32", "v_sqrt_f32")
_REG = re.compile(r"^(-|\|)?(abs\()?([vas])(\d+|\[(\d+):(\d+)\])\)?\|?$")


def regs_of(tok):
    tok = tok.strip()
    if tok in ("vcc", "exec", "m0", "scc"):
        return [tok]
    if tok in ("vcc_lo", "vcc_hi"):
        return ["vcc"]
    if tok in ("exec_lo", "exec_hi"):
        return ["exec"]
    m = _REG.match(tok)
    if not m:
        return []
    k = m.group(3)
    if m.group(5) is not None:
        return [f"{k}{i}" for i in range(int(m.group(5)), int(m.group(6)) + 1)]
    return [f"{k}{int(m.group(4))}"]


class Ins:
    def __init__(self, text, extra_reads=(), cost=None, tag=None, glue=False):
        self.text = text.strip()
        self.tag = tag
        self.glue = glue
        parts = self.text.split(None, 1)
        op = parts[0]
        self.op = op
        rest = parts[1] if len(parts) > 1 else ""
        rest = re.sub(r"\s(op_sel|op_sel_hi|neg_lo|neg_hi):\[[^\]]*\]", "", rest)
        ops = [o.strip() for o in rest.split(",")] if rest else []
        mods = []
        if ops:
            last = ops[-1].split()
            ops[-1] = last[0] if last else ""
            mods = last[1:]
        self.ops, self.mods = ops, mods
        R = [regs_of(o) for o in ops]
        flat = lambda l: [x for y in l for x in y]
        rd, wr = [], []
        self.passes = 0
        self.srcc = []
        self.srcab = []
        self.store_data = []
        self.is_dma = False
        self.is_load = False
        if op.startswith("v_mfma"):
            self.kind = "mfma"
            self.passes = 8 if "32x32" in op else 4
            wr = R[0]
            self.srcab = R[1] + R[2]
            self.srcc = R[3]
            rd = self.srcab + self.srcc
        elif op.startswith("ds_"):
            self.kind = "ds"
            if op.startswith("ds_read"):
                wr, rd = R[0], flat(R[1:])
                self.is_load = True
            else:
                rd = flat(R)
                if "b128" in op or "b96" in op:
                    self.store_data = flat(R[1:])
        elif op.startswith("buffer_") or op.startswith("global_"):
            self.kind = "vmem"
            if "lds" in mods or "_lds_" in op:
                rd = flat(R) + ["m0"]
                self.is_dma = True
            elif "_load_" in op:
                wr, rd = R[0], flat(R[1:])
                self.is_load = True
            else:
                rd = flat(R)
                if "x4" in op or "x3" in op:
                    self.store_data = R[0] if op.startswith("buffer_") else R[1]
        elif op.startswith("v_"):
            base = op.replace("_e32", "").replace("_e64", "").replace("_dpp", "")
            self.kind = "trans" if base in TRANS else "valu"
            if base.startswith("v_permlane") and "swap" in base:
                wr = R[0] + R[1]
                rd = R[0] + R[1]
            elif base.startswith("v_add_co") or base.startswith("v_sub_co") or base.startswith("v_addc_co"):
                wr = R[0] + R[1]
                rd = flat(R[2:])
            elif base == "v_nop":
                pass
            else:
                wr, rd = R[0], flat(R[1:])
                if base.startswith("v_fmac") or base.startswith("v_dot2c") or base.startswith("v_writelane"):
                    rd = rd + R[0]
            self.is_dpp = any(m.startswith("row_") or m.startswith("quad_perm") for m in mods)
        elif op.startswith("s_load") or op in ("s_memtime", "s_memrealtime"):
            self.kind = "smem"
            wr, rd = R[0], flat(R[1:])
        elif op.startswith("s_"):
            self.kind = "salu"
            if op.startswith("s_cmp") or op.startswith("s_bitcmp"):
                rd, wr = flat(R), ["scc"]
            elif op.startswith("s_cbranch") or op in ("s_branch", "s_barrier", "s_nop", "s_waitcnt", "s_sleep", "s_setprio", "s_endpgm"):
                pass
            else:
                wr, rd = R[0], flat(R[1:])
                if "saveexec" in op:
                    wr = wr + ["exec"]
                    rd = rd + ["exec"]
        else:
            self.kind = "misc"
        self.reads = set(rd) | set(extra_reads)
        self.writes = set(wr)
        if cost is None:
            cost = {"mfma": self.passes * 4, "trans": 8, "misc": 0}.get(self.kind, 4)
        self.cost = cost

    def __repr__(self):
        return self.text


class WaitVM:
    kind = "pseudo"; cost = 4; glue = False
    def __init__(self, *toks, glue=False):
        self.toks = toks; self.glue = glue


class WaitLDS:
    kind = "pseudo"; cost = 4; glue = False
    def __init__(self, *toks, glue=False):
        self.toks = toks; self.glue = glue


class Wait:
    kind = "pseudo"; cost = 4; glue = False
    def __init__(self, vm=(), lds=(), glue=False):
        self.vm = vm; self.lds = lds; self.glue = glue


class Raw:
    kind = "raw"; glue = False
    def __init__(self, text, states=0, cost=0, glue=False):
        self.text = text; self.states = states; self.cost = cost; self.glue = glue


class Hold:
    kind = "hold"; cost = 0; glue = False
    def __init__(self, label):
        self.label = label


class Mark:
    kind = "mark"; cost = 0; glue = False
    def __init__(self, label):
        self.label = label


def is_vreg(r):
    return r[0] in "va" and r != "vcc"


def is_sreg(r):
    return r == "vcc" or (r[0] == "s" and r != "scc")


def hazard_need(prev, cur):
    need = 0
    pk, ck = prev.kind, cur.kind
    pvalu = pk in ("valu", "trans")
    cvalu = ck in ("valu", "trans")
    if pvalu:
        w = {r for r in prev.writes if is_vreg(r)}
        ws = {r for r in prev.writes if is_sreg(r)}
        if ck == "mfma" and w & cur.reads:
            need = max(need, 2)
        if cvalu and w & cur.reads:
            if pk == "trans":
                need = max(need, 1)
            if cur.op.startswith("v_permlane") or cur.is_dpp:
                need = max(need, 2)
            if cur.op.startswith("v_readfirstlane") or cur.op.startswith("v_readlane"):
                need = max(need, 1)
        if cvalu and ws & cur.reads:
            need = max(need, 4 if "lane" in cur.op else 2)
        if ck == "vmem" and ws & cur.reads:
            need = max(need, 5)
    if pk == "mfma":
        D = prev.writes
        big = 12 if prev.passes == 8 else 8
        if ck == "mfma":
            if D & set(cur.srcab):
                need = max(need, big)
            if D & set(cur.srcc):
                if not (set(cur.srcc) == D and cur.passes == prev.passes):
                    need = max(need, big - 2)
            elif D & cur.writes:
                need = max(need, big)
        elif cvalu or ck in ("vmem", "ds"):
            if D & (cur.reads | cur.writes):
                need = max(need, big)
        if cvalu and set(prev.srcc) & cur.writes:
            need = max(need, 7 if prev.passes == 8 else 3)
    if pk == "salu" and "m0" in prev.writes and ck == "vmem" and cur.is_dma:
        need = max(need, 1)
    if pk in ("vmem", "ds") and prev.store_data and (cvalu or ck == "mfma") and set(prev.store_data) & cur.writes:
        need = max(need, 2)
    return need


class Emitter:
    drop = None

    def __init__(self):
        self.lines = []
        self.hist = []
        self.lds = []
        self.vm = []
        self.smem = False
        self.smem_regs = set()
        self.lastw = {}
        self.stats = {"nop": 0, "wait": 0, "n": 0, "cyc": 0}

    def fork(self):
        e = Emitter()
        e.hist = list(self.hist); e.lds = list(self.lds); e.vm = list(self.vm)
        e.smem = self.smem; e.smem_regs = set(self.smem_regs); e.lastw = dict(self.lastw)
        return e

    def _push(self, ins, states=1):
        self.hist.append((ins, states))
        if len(self.hist) > 24:
            self.hist.pop(0)

    def _wait(self, nl=None, nv=None):
        parts = []
        if nv is not None:
            nv = min(nv, 63)
            if nv < len(self.vm):
                parts.append(f"vmcnt({nv})")
                self.vm = self.vm[len(self.vm) - nv:] if nv else []
        if nl is not None:
            nl = min(nl, 15)
            if self.smem:
                nl = 0
            if nl < len(self.lds) or self.smem:
                parts.append(f"lgkmcnt({nl})")
                self.lds = self.lds[len(self.lds) - nl:] if nl else []
                if nl == 0:
                    self.smem = False; self.smem_regs = set()
        if parts:
            t = "s_waitcnt " + " ".join(parts)
            self.lines.append("  " + t)
            self._push(Ins(t))
            self.stats["wait"] += 1

    def emit(self, it):
        if isinstance(it, (list, tuple)):
            for x in it:
                self.emit(x)
            return
        if isinstance(it, str):
            for l in it.split("\n"):
                l = l.strip()
                if l:
                    self.emit(Raw(l) if l.endswith(":") or l.startswith(";") or l.startswith(".") else Ins(l))
            return
        if isinstance(it, (Mark, Hold)):
            return
        if isinstance(it, Raw):
            self.lines.append(it.text)
            if it.states:
                self._push(Ins("s_nop 0"), it.states)
            return
        if isinstance(it, Wait):
            for t in list(it.vm) + list(it.lds):
                assert getattr(t, "done", False), ("wait on instruction not yet emitted", t)
            iv = [i for i, o in enumerate(self.vm) if any(o is t for t in it.vm)]
            il = [i for i, o in enumerate(self.lds) if any(o is t for t in it.lds)]
            self._wait(nl=(len(self.lds) - 1 - max(il)) if il else None, nv=(len(self.vm) - 1 - max(iv)) if iv else None)
            return
        if isinstance(it, (WaitVM, WaitLDS)):
            for t in it.toks:
                assert getattr(t, "done", False), ("wait on instruction not yet emitted", t)
        if isinstance(it, WaitVM):
            idx = [i for i, o in enumerate(self.vm) if any(o is t for t in it.toks)]
            if idx:
                self._wait(nv=len(self.vm) - 1 - max(idx))
            return
        if isinstance(it, WaitLDS):
            idx = [i for i, o in enumerate(self.lds) if any(o is t for t in it.toks)]
            if idx:
                self._wait(nl=len(self.lds) - 1 - max(idx))
            return
        ins = it
        if Emitter.drop and re.search(Emitter.drop, ins.text):
            ins.done = True
            for r in ins.writes:
                self.lastw[r] = ins
            return
        if ins.op == "s_waitcnt":
            m = re.search(r"vmcnt\((\d+)\)", ins.text)
            nv = int(m.group(1)) if m else None
            m = re.search(r"lgkmcnt\((\d+)\)", ins.text)
            nl = int(m.group(1)) if m else None
            if nv is not None and nv < len(self.vm):
                self.vm = self.vm[len(self.vm) - nv:] if nv else []
            if nl is not None and (nl == 0 or not self.smem):
                if nl < len(self.lds):
                    self.lds = self.lds[len(self.lds) - nl:] if nl else []
                if nl == 0:
                    self.smem = False; self.smem_regs = set()
            self.lines.append("  " + ins.text)
            self._push(ins)
            return
        touch = ins.reads | ins.writes
        nl = nv = None
        for i, o in enumerate(self.lds):
            if o.is_load and o.writes & touch:
                nl = len(self.lds) - 1 - i
        for i, o in enumerate(self.vm):
            if o.is_load and o.writes & touch:
                nv = len(self.vm) - 1 - i
        if self.smem and self.smem_regs & touch:
            nl = 0
        self._wait(nl, nv)
        for t in getattr(ins, "after", ()):
            assert getattr(t, "done", False), ("must come after", ins, t)
            assert not any(t is o for o in self.lds) and not any(t is o for o in self.vm), ("still outstanding", ins, t)
        for t in getattr(ins, "expect", ()):
            for r in t.writes & ins.reads:
                assert self.lastw.get(r) is t, ("wrong producer", ins, t, self.lastw.get(r))
        for r in ins.reads:
            assert r in self.lastw or r in ("s0", "s1", "s2", "v0", "exec", "scc") or ins.op.startswith("v_writelane"), ("read before write", ins, r)
        for r in ins.writes:
            self.lastw[r] = ins
        dist = 0
        need = 0
        for prev, st in reversed(self.hist):
            n = hazard_need(prev, ins)
            if n - dist > need:
                need = n - dist
            dist += st
        while need > 0:
            k = min(need, 16)
            self.lines.append(f"  s_nop {k-1}")
            self._push(Ins(f"s_nop {k-1}"), k)
            self.stats["nop"] += k
            need -= k
        self.lines.append("  " + ins.text)
        st = 1
        if ins.op == "s_nop":
            st = int(ins.ops[0]) + 1
        self._push(ins, st)
        self.stats["n"] += 1
        assert not getattr(ins, "done", False), ("emitted twice", ins)
        ins.done = True
        if ins.kind == "ds":
            self.lds.append(ins)
        elif ins.kind == "vmem":
            self.vm.append(ins)
        elif ins.kind == "smem":
            self.smem = True
            self.smem_regs |= ins.writes

    def text(self):
        return "\n".join(self.lines) + "\n"


def I(s, **k):
    return [Ins(l, **k) for l in s.split("\n") if l.strip()]


def interleave(main, fillers, budget=24, verbose=None):
    gaps = [[]]
    labels = {}
    for it in main:
        if isinstance(it, Mark):
            labels[it.label] = len(gaps)
            continue
        if it.kind == "mfma":
            gaps.append([it])
        else:
            gaps[-1].append(it)
    ng = len(gaps)
    used = [sum(x.cost for x in g if x.kind != "mfma") for g in gaps]
    cap = []
    for g in gaps:
        if g and g[0].kind == "mfma":
            cap.append(budget if g[0].passes == 8 else 8)
        else:
            cap.append(0)
    extra = [[] for _ in gaps]
    for (l0, l1, items) in fillers:
        segs = [(labels[l0], [])]
        for it in items:
            if isinstance(it, Hold):
                segs.append((labels[it.label], []))
            else:
                segs[-1][1].append(it)
        end = min(labels[l1], ng)
        pos = labels[l0]

        def place(over, commit):
            g = labels[l0]
            u = list(used)
            carry = 0.0
            out = []
            for (st, its) in segs:
                if st > g:
                    g = st; carry = 0.0
                for it in its:
                    c = 8 if it.kind == "mfma" else it.cost
                    if not it.glue:
                        while g < end and u[g] + c > cap[g] + over + 1e-9:
                            g += 1
                    if g >= end:
                        return None
                    u[g] += c
                    if it.kind == "mfma":
                        u[g] -= (it.cost)
                    out.append((g, it))
            return out, u
        over = 0
        while True:
            r = place(over, True)
            if r is not None:
                break
            over += 2
            assert over < 400, ("cannot place", l0, l1)
        out, used = r
        for g, it in out:
            extra[g].append(it)
        if verbose is not None:
            last = out[-1][0] if out else None
            verbose.append(f"filler {l0}->{l1}: {len(out)} items, over={over}, gaps {labels[l0]}..{end}, last used {last}")
    res = []
    for g, e in zip(gaps, extra):
        res += g + e
    return res


class Gap:
    def __init__(self, mfma):
        self.mfma = mfma
        self.head = []
        self.pre = []
        self.mem = []
        self.val = []

    def cap(self):
        if self.mfma is None:
            return -1000
        return 24 if self.mfma.passes == 8 else 8

    def cost(self, extra=None, sec=None):
        pre = self.pre + ([extra] if sec == 0 else [])
        mem = self.mem + ([extra] if sec == 1 else [])
        val = self.val + ([extra] if sec == 2 else [])
        c = 0
        n = 0
        for x in pre:
            if isinstance(x, Raw) or getattr(x, "cost", 4) == 0:
                continue
            if getattr(x, "op", "") == "s_barrier":
                c += 12
            elif getattr(x, "kind", "") == "vmem":
                c += 12
            else:
                c += 4
            n += 1
        if n:
            c -= 4
        nds = sum(1 for x in mem if x.kind == "ds" and x.is_load)
        nvm = sum(1 for x in mem if x.kind == "vmem" and (x.is_load or x.is_dma))
        c += 4 * nds + (1.5 * (nds - 2) if nds > 2 else 0)
        if nvm == 1:
            c += 8 if nds else 12
        elif nvm > 1:
            c += 14 * nvm
        for x in mem:
            if x.kind == "ds" and not x.is_load:
                c += 23 if "b128" in x.op else 12
            elif x.kind == "vmem" and not (x.is_load or x.is_dma):
                c += 29 if "x4" in x.op else 16
        c += sum(x.cost for x in val)
        return c

    def items(self):
        rd = [x for x in self.mem if x.kind == "ds" and x.is_load]
        vm = [x for x in self.mem if x.kind == "vmem"]
        wr = [x for x in self.mem if x.kind == "ds" and not x.is_load]
        return self.head + ([self.mfma] if self.mfma is not None else []) + self.pre + rd + vm + wr + self.val


def _rw(x):
    r = set(getattr(x, "reads", ())); w = set(getattr(x, "writes", ()))
    if getattr(x, "kind", "") == "salu":
        op = x.op
        if op.startswith(("s_cselect", "s_addc", "s_subb", "s_cbranch_scc")):
            r.add("scc")
        if op.startswith(("s_add", "s_sub", "s_lshl", "s_lshr", "s_and", "s_or", "s_xor", "s_cmp", "s_min", "s_max", "s_bfe")):
            w.add("scc!")
            if op.startswith(("s_cmp", "s_add_u32", "s_sub_u32")):
                w.add("scc")
    if getattr(x, "op", "").startswith(("v_cndmask", "s_cbranch_vcc")):
        r.add("vcc")
    return r, w


def conflict(a, b):
    if not isinstance(a, Ins) or not isinstance(b, Ins):
        return True
    if a.op.startswith(("s_cbranch", "s_barrier")) or b.op.startswith(("s_cbranch", "s_barrier")):
        return True
    if a.kind == b.kind and a.kind in ("ds", "vmem"):
        return True
    ra, wa = _rw(a); rb, wb = _rw(b)
    if "scc" in ra and ("scc!" in wb):
        return True
    if "scc" in rb and ("scc!" in wa):
        return True
    wa = wa - {"scc!", "scc"}; wb = wb - {"scc!", "scc"}
    return bool(wa & rb or wa & wb or ra & wb)


class Sched:
    def __init__(self, log=None):
        self.gaps = [Gap(None)]
        self.labels = {}
        self.pending = []
        self.log = log

    def label(self, name):
        self.pending.append(name)

    def mfma(self, ins):
        g = Gap(ins)
        self.gaps.append(g)
        for n in self.pending:
            self.labels[n] = g
        self.pending = []
        return g

    def finish(self):
        g = Gap(None)
        self.gaps.append(g)
        for n in self.pending:
            self.labels[n] = g
        self.pending = []

    def idx(self, gaps, name):
        return gaps.index(self.labels[name])

    def _try(self, items, l0, l1, over, space, pace):
        gaps = list(self.gaps)
        add = {}
        def sh(g):
            if id(g) not in add:
                n = Gap(g.mfma); n.pre = list(g.pre); n.mem = list(g.mem); n.val = list(g.val)
                add[id(g)] = n
            return add[id(g)]
        cur = self.idx(gaps, l0)
        placed = []
        lastv = None
        lastw = 1
        frac = 0
        npace = 0
        carry = 0
        for it in items:
            if isinstance(it, Hold):
                cur = max(cur, self.idx(gaps, it.label))
                continue
            end = self.idx(gaps, l1)
            kind = it.kind
            lbg, lbs = -1, -1
            for (y, g, sec) in placed[-80:]:
                if conflict(y, it):
                    gi = gaps.index(g)
                    lat = 0
                    if isinstance(y, Ins) and isinstance(it, Ins) and (y.writes & it.reads):
                        if y.kind == "ds":
                            lat = getattr(y, "lat", 3)
                        elif y.kind == "mfma" and not (it.kind == "mfma" and set(it.srcc) == y.writes):
                            lat = getattr(y, "lat", 2)
                    if lat:
                        gi, sec = gi + lat, -1
                    if (gi, sec) > (lbg, lbs):
                        lbg, lbs = gi, sec
            if it.glue:
                y, g, sec = placed[-1]
                (sh(g).pre, sh(g).mem, sh(g).val)[sec].append(it)
                placed.append((it, g, sec))
                continue
            if kind == "mfma":
                cur = max(cur, lbg if lbs >= 0 or lbg < 0 else lbg - 1)
                if cur >= end:
                    return None
                ng = Gap(it)
                gaps.insert(cur + 1, ng)
                add[id(ng)] = ng
                cur += 1
                placed.append((it, ng, -1))
                continue
            if kind in ("ds", "vmem"):
                g = max(cur, lbg if lbs <= 1 else lbg + 1)
                if kind == "vmem" and lastv is not None:
                    g = max(g, gaps.index(lastv) + int(frac + space * lastw))
                while g < end:
                    G = sh(gaps[g])
                    ok = G.cost(it, 1) <= G.cap() + over + 1e-9
                    if not ok and not G.val and G.cap() > 8 and not any(not (x.kind == "ds" and x.is_load) for x in G.mem):
                        ok = True
                    if ok and it.kind == "ds" and it.is_load and any(x.kind == "ds" and not x.is_load for x in G.mem):
                        ok = False
                    if ok and it.kind == "vmem" and space and any(x.kind == "vmem" for x in G.mem):
                        ok = False
                    if ok:
                        break
                    g += 1
                if g >= end:
                    return None
                sh(gaps[g]).mem.append(it)
                placed.append((it, gaps[g], 1))
                if kind == "vmem":
                    frac = (frac + space * lastw) % 1
                    lastv = gaps[g]
                    lastw = getattr(it, "weight", 1) if "x4" in it.op else 0.5
                if getattr(it, "pace", False):
                    npace += 1
                    cur = g + (1 if npace % pace == 0 else 0)
                continue
            if kind in ("salu", "pseudo", "smem"):
                g = max(cur, lbg if lbs <= 0 else lbg + 1)
                done = False
                for gg in (g, g + 1):
                    if gg < end and not sh(gaps[gg]).pre and gaps[gg].mfma is not None:
                        sh(gaps[gg]).pre.append(it)
                        placed.append((it, gaps[gg], 0))
                        done = True
                        break
                if done:
                    continue
            g = max(cur, lbg)
            if g != cur:
                carry = 0
            while g < end and sh(gaps[g]).cost(it, 2) > gaps[g].cap() + over + carry + 1e-9:
                if over:
                    carry = max(-8, min(8, gaps[g].cap() + over + carry - max(sh(gaps[g]).cost(), gaps[g].cap())))
                g += 1
            if g >= end:
                return None
            sh(gaps[g]).val.append(it)
            placed.append((it, gaps[g], 2))
            cur = g
        return gaps, add, placed

    def place(self, items, l0, l1, over=0, space=1, name="", pace=2):
        o = over
        while True:
            r = self._try(items, l0, l1, o, space, pace)
            if r is not None:
                break
            o += 1
            if o > over + 8 and space > 1:
                o, space = over, space - 0.25
            assert o < 600, ("cannot place", name, l0, l1)
        gaps, add, placed = r
        for g in gaps:
            n = add.get(id(g))
            if n is not None and n is not g:
                g.pre, g.mem, g.val = n.pre, n.mem, n.val
        self.gaps = gaps
        if self.log is not None and placed:
            names = {id(g): k for k, g in self.labels.items()}
            last = max(gaps.index(g) for _, g, _ in placed)
            k = last
            while id(gaps[k]) not in names:
                k -= 1
            self.log.append(f"  place {name} {l0}->{l1}: {len(placed)} items over={o} space={space} last={names[id(gaps[k])]}+{last-k}")

    def est(self, l0, l1):
        a, b = self.idx(self.gaps, l0), self.idx(self.gaps, l1)
        return sum(max(g.cap() + 8, 8 + g.cost()) for g in self.gaps[a:b] if g.mfma is not None)

    def items(self):
        o = []
        for g in self.gaps:
            o += g.items()
        return o
```

```python
import sys, struct, math
from fw import *

NAME = "gated_mix__linear_kernel_hedgehog__glu_gated_geglu__prompt"


def f2u(x):
    return struct.unpack("<I", struct.pack("<f", x))[0]


LOG2E = 1.4426950408889634
K1 = -2.0 * math.sqrt(2.0 / math.pi) * LOG2E
K2 = K1 * 0.044715

WS_KVX = 0xA00000
WS_KVZ = 0xA80000
WS_FL = 0xA90000
WS_PROF = 0xB00000
WS_SIZE = 0xC00000
OOB = 0x7FFFFF00

L_W = 0
L_X = 65536
L_PK = 65536
L_PV = 98304
L_CG = 115712
L_CZ = L_CG + 1024
L_CP = L_CG + 2048
L_GX = L_CG + 4096
L_FX = 65536
LDS_BYTES = 163840

P_X, P_WQKV, P_WPHI, P_WO, P_BX, P_WG, P_WU, P_WD, P_GW, P_OUT, P_DBG, P_WS = range(4, 28, 2)
R_X, R_W, R_WS, R_WD, R_WO, R_OUT, R_DBG = 28, 32, 36, 40, 44, 48, 52
S_KVX, S_KVZ, S_KVP, S_SLOW = 28, 29, 30, 31
S_SPIN = 3
S_MSK = 20
S_RT = 56
S_WAVE, S_WR, S_WC, S_M, S_RB, S_ROT = 58, 59, 60, 61, 62, 63
S_CH = 64
S_CH3 = 72
S_W4K, S_W8K, S_TX, S_TW = 76, 77, 78, 79
S_W2B, S_W2N, S_TYPE, S_W3B, S_W3N = 80, 82, 83, 84, 86
S_H1, S_H2, S_H3 = 87, 88, 89
S_LB = 90
S_LA = 93
S_PB = 96
S_T0, S_T1, S_T2 = 97, 98, 99
S_ST0 = 100
STP = (0, 8)

ACCA, ACCB = 0, 64
WF = 128
GF = 144
GA = 152
XA = 156
XV = 164
WV = 168
WA, WA3, GAD = 172, 173, 174
LANE = 175
NONCE = 176
PF = 178
POLL8, POLL4, FLOFF = 180, 181, 182
L16 = 183
C1 = 184
GG = 186
HV = 188
AV = 190
PHI = 192
BA = 200
VK1 = 206
VL2E = 207
T = 208
KBU = (144, 148, 156, 160)
GXA = T + 17
K_VW, K_ONE, K_PW, K_PR, K_VR, K_ZO = T + 18, T + 19, T + 20, T + 22, T + 23, T + 24
K_D = T + 28
Q_SEL, Q_ZR, Q_Z, Q_F, Q_FW, Q_FR, Q_KP = T + 20, T + 24, T + 28, T + 36, T + 44, T + 45, T + 18
ACC0 = ACCA + 48
A_REG = [0, 32, 192, 224, 0, 32, 128, 160, 192]
A_KVX = 128


def v(a, n=1):
    return f"v{a}" if n == 1 else f"v[{a}:{a+n-1}]"


def a_(a, n=1):
    return f"a{a}" if n == 1 else f"a[{a}:{a+n-1}]"


def s(a, n=1):
    return f"s{a}" if n == 1 else f"s[{a}:{a+n-1}]"


def G(txt):
    l = I(txt)
    for x in l[1:]:
        x.glue = True
    return l


class Cfg:
    prof = 0
    rotmode = 2
    dma_flags = ""
    b_flags = ""
    out_flags = ""
    spin_limit = 1 << 14
    padto = 0
    chan = ""
    kover = 14
    drop = ""
    mp = 0
    mpb = 4
    par = 1
    pf = 1


class Gen:
    def __init__(self, cfg):
        self.cfg = cfg
        self.slow = []
        self.nlab = 0
        self.log = []
        self.names = {}
        self.stamps = []

    def stamp(self, name, lvl=1):
        if self.cfg.chan == name:
            return [Ins(f"s_memrealtime {s(S_ST0,2)}", cost=0)]
        if self.cfg.prof < lvl:
            return []
        return [Stamp(name)]

    def expand_stamps(self, items):
        o = []
        for it in items:
            if isinstance(it, Stamp):
                k = len(self.stamps)
                self.stamps.append(it.name)
                if k >= 2:
                    o.append(Ins(f"v_writelane_b32 {v(self.streg)}, {s(STP[k%2])}, {k-2}"))
                o.append(Ins(f"s_memtime {s(STP[k%2],2)}"))
            else:
                o.append(it)
        return o

    def poll_issue(self, voff, soff, imm):
        return Ins(f"buffer_load_dwordx2 {v(PF,2)}, {v(voff)}, {s(R_WS,4)}, {s(soff)} offen offset:{imm} sc1")

    def slow_path(self, ld, test, bit):
        n = self.nlab; self.nlab += 1
        mark = f"  s_add_u32 {s(S_SLOW)}, {s(S_SLOW)}, {1 << (4*bit)}\n" if self.cfg.prof else ""
        self.slow.append(f"""L_slow{n}:
  s_mov_b32 {s(S_SPIN)}, 0
L_slow{n}_l:
{mark}  s_add_u32 {s(S_SPIN)}, {s(S_SPIN)}, 1
  s_cmp_gt_u32 {s(S_SPIN)}, {self.cfg.spin_limit}
  s_cbranch_scc1 L_ret{n}
  {ld.text}
  s_waitcnt vmcnt(0)
  {test}
  s_cbranch_vccnz L_slow{n}_l
  s_branch L_ret{n}""")
        return G(test) + [Ins(f"s_cbranch_vccnz L_slow{n}", glue=True), Raw(f"L_ret{n}:", glue=True)]

    def poll_check(self, ld, bit):
        return self.slow_path(ld, f"v_cmp_ne_u64 vcc, {v(PF,2)}, {v(NONCE,2)}", bit)

    def flag_store(self, idx):
        return Ins(f"buffer_store_dwordx2 {v(NONCE,2)}, {v(FLOFF)}, {s(R_WS,4)}, 0 offen offset:{idx*8} sc1")

    def dma_x(self, c):
        p = I(f"s_lshl_b32 {s(S_TX)}, {s(S_CH + c)}, 7\ns_add_u32 m0, {s(S_W4K)}, {L_X + (c % 3) * 16384}")
        d = [Ins(f"buffer_load_dwordx4 {v(XV+j)}, {s(R_X,4)}, {s(S_TX)} offen offset:{j*1024} {self.cfg.dma_flags} lds") for j in range(4)]
        self.toks.setdefault(c, []).extend(d)
        return p + d

    def dma_w(self, c, mul=None):
        typ = self.typ
        if c < 16:
            rs = 3072 if (typ == "K" and c < 8) else 3584
            ch = S_CH + (c % 8)
        else:
            rs = 3584 if typ == "K" else 3072
            ch = S_CH3 + (c - 16)
        pre = []
        if c == 8:
            pre += I(f"s_mov_b32 {s(R_W)}, {s(S_W2B)}\ns_mov_b32 {s(R_W+1)}, {s(S_W2B+1)}\ns_mov_b32 {s(R_W+2)}, {s(S_W2N)}")
            if typ == "K":
                pre += self.wv_full(3584)
        if c == 16:
            pre += I(f"s_mov_b32 {s(R_W)}, {s(S_W3B)}\ns_mov_b32 {s(R_W+1)}, {s(S_W3B+1)}\ns_mov_b32 {s(R_W+2)}, {s(S_W3N)}")
            pre += self.wv_half() if typ == "K" else self.wv_full(3072)
        pre += I(f"s_mul_i32 {s(S_TW)}, {s(ch)}, {mul or 64*rs}")
        m = I(f"s_add_u32 m0, {s(S_W4K)}, {L_W + (c % 4) * 16384}")
        d = [Ins(f"buffer_load_dwordx4 {v(WV+j)}, {s(R_W,4)}, {s(S_TW)} offen offset:{j*1024} {self.cfg.dma_flags} lds") for j in range(4)]
        self.toks.setdefault(c, []).extend(d)
        return pre, m + d

    def wv_full(self, rs, steps=None):
        o = I(f"""v_lshrrev_b32 {v(WV+1)}, 3, {v(LANE)}
v_lshl_add_u32 {v(WV+1)}, {s(S_WC)}, 5, {v(WV+1)}
v_mul_u32_u24 {v(WV+1)}, {rs}, {v(WV+1)}
v_lshrrev_b32 {v(WV+2)}, 2, {v(LANE)}
v_and_b32 {v(WV+2)}, 4, {v(WV+2)}
v_and_b32 {v(WV+3)}, 7, {v(LANE)}
v_xor_b32 {v(WV+2)}, {v(WV+2)}, {v(WV+3)}
v_lshl_add_u32 {v(WV)}, {v(WV+2)}, 4, {v(WV+1)}""")
        for j in range(1, 4):
            o += I(f"v_add_u32 {v(WV+j)}, {steps or (8*rs-1024)}, {v(WV+j-1)}")
        return o

    def wv_half(self):
        o = I(f"""v_lshrrev_b32 {v(WV+1)}, 2, {v(LANE)}
v_mul_u32_u24 {v(WV+1)}, 3584, {v(WV+1)}
v_and_b32 {v(WV+2)}, 3, {v(LANE)}
v_lshlrev_b32 {v(WV+3)}, 1, {s(S_WR)}
v_xor_b32 {v(WV+2)}, {v(WV+2)}, {v(WV+3)}
v_lshl_add_u32 {v(WV)}, {v(WV+2)}, 4, {v(WV+1)}""")
        for j in range(1, 4):
            o += I(f"v_add_u32 {v(WV+j)}, {j*(16*3584-1024)}, {v(WV)}")
        return o

    def bv_setup(self):
        o = I(f"""v_lshrrev_b32 {v(XV+1)}, 3, {v(LANE)}
v_lshlrev_b32 {v(XV+1)}, 10, {v(XV+1)}
v_lshrrev_b32 {v(XV+2)}, 2, {v(LANE)}
v_and_b32 {v(XV+2)}, 4, {v(XV+2)}
v_and_b32 {v(XV+3)}, 7, {v(LANE)}
v_xor_b32 {v(XV+2)}, {v(XV+2)}, {v(XV+3)}
v_lshl_add_u32 {v(XV)}, {v(XV+2)}, 4, {v(XV+1)}""")
        for j in range(1, 4):
            o += I(f"v_add_u32 {v(XV+j)}, {j*(8*1024-1024)}, {v(XV)}")
        return o

    BLK = [(12, 0), (12, 1), (20, 0), (20, 1), (0, 0), (0, 1), (8, 2), (28, 0), (28, 1)]
    BQ = [4, 2, 3, 0, 1, 4, 2, 3, 0]
    POLLS = {0: (POLL8, 1024), 2: (POLL8, 1024 + 8), 4: (POLL8, 8), 6: (POLL4, 16), 7: (POLL8, 1024 + 16)}

    def dma_b(self, b, halves=(0, 1)):
        base, li = self.BLK[b]
        srd = R_WD
        if base == 28:
            srd, base = R_WO, 0
        o = []
        for half in halves:
            o += I(f"""s_add_u32 {s(S_TX)}, {s(S_LB+li)}, {base*65536 + half*32768}
s_add_u32 m0, {s(S_W8K)}, {self.BQ[b]*32768 + half*4096}""")
            d = [Ins(f"buffer_load_dwordx4 {v(XV+j)}, {s(srd,4)}, {s(S_TX)} offen offset:{j*1024} {self.cfg.b_flags} lds") for j in range(4)]
            self.btok[b].extend(d)
            o += d
        return o

    def load_a(self, b):
        base, li = self.BLK[b]
        o = []
        for ks in range(4):
            if ks % 2 == 0:
                o += I(f"s_add_u32 {s(S_T0 + ks//2)}, {s(S_LA+li)}, {base*8192 + (ks//2)*4096}")
            for rt in range(2):
                r = A_REG[b] + (ks * 2 + rt) * 4
                d = Ins(f"buffer_load_dwordx4 {a_(r,4)}, {v(AV+rt)}, {s(R_WS,4)}, {s(S_T0 + ks//2)} offen offset:{(ks&1)*2048} sc1")
                self.atok[(b, ks)].append(d)
                o.append(d)
        return o

    def poll_blk(self, b):
        vo, im = self.POLLS[b]
        return self.poll_issue(vo, S_PB, im)

    def gu_frag(self, g, u, rt, soff, imm, d0):
        o = []
        t0 = T
        c = v(C1 + rt)
        R = range(8)
        o += [Ins(f"v_mul_f32 {v(t0+i)}, {v(g+i)}, {v(g+i)}") for i in R]
        o += [Ins(f"v_fmamk_f32 {v(t0+i)}, {v(t0+i)}, {hex(f2u(K2))}, {v(VK1)}") for i in R]
        o += [Ins(f"v_mul_f32 {v(t0+i)}, {v(t0+i)}, {v(g+i)}") for i in R]
        for i in R:
            o.append(Ins(f"v_exp_f32 {v(t0+i)}, {v(t0+i)}"))
            o.append(Ins(f"v_mul_f32 {v(u+i)}, {v(g+i)}, {v(u+i)}"))
        for i in range(9):
            if i < 8:
                o.append(Ins(f"v_fma_f32 {v(t0+i)}, {v(t0+i)}, {c}, {c}"))
            if i > 0:
                o.append(Ins(f"v_rcp_f32 {v(t0+i-1)}, {v(t0+i-1)}"))
        o += [Ins(f"v_mul_f32 {v(u+i)}, {v(u+i)}, {v(t0+i)}") for i in R]
        o += [Ins(f"v_cvt_pk_bf16_f32 {v(d0+i)}, {v(u+2*i)}, {v(u+2*i+1)}") for i in range(4)]
        st = Ins(f"buffer_store_dwordx4 {v(d0,4)}, {v(HV+rt)}, {s(R_WS,4)}, {s(soff)} offen offset:{imm} sc1")
        o.append(st)
        return o, st

    def gu_full(self, acc, soff, rts=(0, 1)):
        o, sts = [], []
        for rt in rts:
            for t in range(2):
                x, st = self.gu_frag(acc + rt * 16 + t * 8, acc + 32 + rt * 16 + t * 8, rt, soff, t * 2048, T + 8 + 4 * t)
                o += x; sts.append(st)
        return o, sts

    def softmax(self, P, D, t0):
        o = []
        a, b = t0, t0 + 1
        o.append(Ins(f"v_max3_f32 {v(a)}, {v(P)}, {v(P+1)}, {v(P+2)}"))
        for i in range(3, 15, 2):
            o.append(Ins(f"v_max3_f32 {v(a)}, {v(a)}, {v(P+i)}, {v(P+i+1)}"))
        o.append(Ins(f"v_max_f32 {v(a)}, {v(a)}, {v(P+15)}"))
        o.append(Ins(f"v_mul_f32 {v(a)}, {hex(f2u(-LOG2E))}, {v(a)}"))
        for i in range(18):
            if i < 16:
                o.append(Ins(f"v_fma_f32 {v(P+i)}, {v(P+i)}, {v(VL2E)}, {v(a)}"))
            if 1 <= i < 17:
                o.append(Ins(f"v_exp_f32 {v(P+i-1)}, {v(P+i-1)}"))
            j = i - 2
            if j == 1:
                o.append(Ins(f"v_add_f32 {v(b)}, {v(P)}, {v(P+1)}"))
            elif j > 1:
                o.append(Ins(f"v_add_f32 {v(b)}, {v(b)}, {v(P+j)}"))
        o.append(Ins(f"v_rcp_f32 {v(b)}, {v(b)}"))
        for i in range(16):
            o.append(Ins(f"v_mul_f32 {v(P+i)}, {v(P+i)}, {v(b)}"))
        for i in range(8):
            o.append(Ins(f"v_cvt_pk_bf16_f32 {v(D+i)}, {v(P+2*i)}, {v(P+2*i+1)}"))
        return o

    def gate_consts(self, src, rt):
        t = T + 16
        o = I(f"""v_mul_f32 {v(t)}, {v(VL2E)}, {v(src)}
v_exp_f32 {v(C1+rt)}, {v(t)}""")
        if self.typ == "Q":
            o += I(f"v_exp_f32 {v(GG+rt)}, -{v(t)}")
        o += I(f"v_add_f32 {v(C1+rt)}, 1.0, {v(C1+rt)}")
        if self.typ == "Q":
            o += I(f"v_add_f32 {v(GG+rt)}, 1.0, {v(GG+rt)}")
        o += I(f"v_min_f32 {v(C1+rt)}, {hex(f2u(2.0**100))}, {v(C1+rt)}")
        if self.typ == "Q":
            o += I(f"v_rcp_f32 {v(GG+rt)}, {v(GG+rt)}")
        return o

    def qk_cvt(self):
        o = []
        for u in range(4):
            b0 = ACCA + u * 8
            o += [Ins(f"v_cvt_pk_bf16_f32 {v(KBU[u]+i)}, {v(b0+2*i)}, {v(b0+2*i+1)}") for i in range(4)]
        return o

    def p_mfma(self, u):
        return Ins(f"v_mfma_f32_32x32x16_bf16 {v(ACCA+(u&1)*16,16)}, {v(PHI+(u&1)*4,4)}, {v(KBU[u],4)}, 0")

    def mall_pf(self, slot):
        d, t = v(ACCB + 20 + slot), v(ACCB + 22 + slot)
        base = s(S_LA + 1, 2) if slot == 0 else s(P_BX, 2)
        n = s(S_LA) if slot == 0 else s(S_SPIN)
        if slot == 0:
            o = G(f"""s_cmp_eq_u32 {s(S_WC)}, 0
s_cselect_b64 {base}, {s(P_X,2)}, {s(P_WQKV,2)}
s_cselect_b64 {s(S_LB,2)}, {s(P_WG,2)}, {s(P_WU,2)}
s_cselect_b32 {n}, 64, 48
s_cmp_eq_u32 {s(S_WR)}, 0
s_cselect_b64 {base}, {base}, {s(S_LB,2)}
s_cselect_b32 {n}, {n}, 56""")
            o += I(f"""v_mov_b32 {t}, {n}
v_add_u32 {d}, -1, {t}
v_min_u32 {d}, {v(LANE)}, {d}
v_mad_u32_u24 {t}, {t}, s2, {d}
v_lshlrev_b32 {t}, 7, {t}
global_load_dword {d}, {t}, {base}""")
        else:
            o = G(f"""s_mul_i32 {n}, s2, 3
s_add_u32 {n}, {n}, {s(S_WAVE)}
s_cmp_eq_u32 {s(S_WAVE)}, 3
s_cselect_b64 {base}, {s(P_WO,2)}, {s(P_WD,2)}
s_cselect_b32 {n}, s2, {n}
v_mov_b32 {t}, {n}
s_cselect_b32 {n}, 16, 19
v_mul_u32_u24 {t}, {n}, {t}
s_sub_u32 {n}, {n}, 1
v_min_u32 {d}, {n}, {v(LANE)}
v_add_u32 {t}, {t}, {d}
v_min_u32 {t}, 14335, {t}
v_lshlrev_b32 {t}, 7, {t}""")
            o += I(f"global_load_dword {d}, {t}, {base}")
        return o

    def prologue(self, e):
        cfg = self.cfg
        self.toks = {}
        self.typ = None
        e.emit(f"""s_cmp_ge_u32 s2, 256
s_cbranch_scc1 L_end
s_load_dwordx16 s[4:19], s[0:1], 0
s_load_dwordx8 s[20:27], s[0:1], 64
s_memrealtime {s(S_RT,2)}""")
        if cfg.prof:
            e.emit(f"s_memtime {s(S_ST0,2)}")
        e.emit(f"""v_lshrrev_b32 v1, 6, v0
v_and_b32 {v(LANE)}, 63, v0
v_readfirstlane_b32 {s(S_WAVE)}, v1
s_lshr_b32 {s(S_T1)}, s2, 3""")
        if cfg.pf:
            e.emit(f"""s_getpc_b64 {s(S_W2B,2)}
L_pc:
v_lshlrev_b32 v2, 3, v0
v_lshl_add_u32 v2, {s(S_T1)}, 11, v2
v_min_u32 v2, L_end-L_pc, v2
global_load_dword {v(ACCB)}, v2, {s(S_W2B,2)}""")
        e.emit(f"""s_bfe_u32 {s(S_RB)}, s2, {2 | (1 << 16)}
s_and_b32 {s(S_T2)}, {s(S_T1)}, 7
s_lshl3_add_u32 {s(S_RB)}, {s(S_RB)}, {s(S_T2)}
s_lshr_b32 {s(S_T1)}, {s(S_T1)}, 3
s_lshr_b32 {s(S_TYPE)}, {s(S_T1)}, 1
s_and_b32 {s(S_M)}, s2, 3
s_and_b32 {s(S_TX)}, {s(S_T1)}, 1
s_lshl1_add_u32 {s(S_M)}, {s(S_M)}, {s(S_TX)}""")
        rm = cfg.rotmode
        if rm == 0:
            e.emit(f"s_mov_b32 {s(S_ROT)}, 0")
        elif rm == 1:
            e.emit(f"s_add_u32 {s(S_ROT)}, {s(S_T1)}, {s(S_T2)}\ns_lshl_b32 {s(S_ROT)}, {s(S_ROT)}, 2\ns_and_b32 {s(S_ROT)}, {s(S_ROT)}, 7")
        elif rm == 3:
            e.emit(f"s_add_u32 {s(S_ROT)}, {s(S_T1)}, {s(S_T2)}\ns_lshl_b32 {s(S_ROT)}, {s(S_ROT)}, 1\ns_and_b32 {s(S_ROT)}, {s(S_ROT)}, 7")
        elif rm == 4:
            e.emit(f"s_lshl2_add_u32 {s(S_ROT)}, {s(S_T1)}, {s(S_T2)}\ns_and_b32 {s(S_ROT)}, {s(S_ROT)}, 7")
        elif rm == 6:
            e.emit(f"""s_bfe_u32 {s(S_ROT)}, s2, {2 | (1 << 16)}
s_lshl1_add_u32 {s(S_ROT)}, {s(S_ROT)}, s2
s_and_b32 {s(S_TX)}, {s(S_T2)}, 1
s_add_u32 {s(S_ROT)}, {s(S_ROT)}, {s(S_TX)}
s_lshl_b32 {s(S_ROT)}, {s(S_ROT)}, 1
s_and_b32 {s(S_ROT)}, {s(S_ROT)}, 7""")
        elif rm == 7:
            e.emit(f"""s_bfe_u32 {s(S_ROT)}, s2, {2 | (1 << 16)}
s_lshl1_add_u32 {s(S_ROT)}, {s(S_ROT)}, s2
s_and_b32 {s(S_TX)}, {s(S_T2)}, 3
s_lshl1_add_u32 {s(S_ROT)}, {s(S_ROT)}, {s(S_TX)}
s_and_b32 {s(S_ROT)}, {s(S_ROT)}, 7""")
        elif rm == 8:
            e.emit(f"""s_bfe_u32 {s(S_ROT)}, s2, {2 | (1 << 16)}
s_lshl1_add_u32 {s(S_ROT)}, {s(S_ROT)}, s2
s_and_b32 {s(S_TW)}, {s(S_T2)}, 3
s_add_u32 {s(S_TX)}, {s(S_TX)}, {s(S_TW)}
s_lshl1_add_u32 {s(S_ROT)}, {s(S_ROT)}, {s(S_TX)}
s_and_b32 {s(S_ROT)}, {s(S_ROT)}, 7""")
        elif rm == 9:
            e.emit(f"""s_bfe_u32 {s(S_ROT)}, s2, {2 | (1 << 16)}
s_lshl1_add_u32 {s(S_ROT)}, {s(S_ROT)}, s2
s_lshl_b32 {s(S_ROT)}, {s(S_ROT)}, 1
s_and_b32 {s(S_ROT)}, {s(S_ROT)}, 7""")
        elif rm == 5:
            e.emit(f"s_mov_b32 {s(S_ROT)}, {s(S_T2)}")
        else:
            e.emit(f"s_lshl1_add_u32 {s(S_ROT)}, {s(S_T1)}, {s(S_T2)}\ns_and_b32 {s(S_ROT)}, {s(S_ROT)}, 7")
        e.emit(f"""s_lshr_b32 {s(S_WR)}, {s(S_WAVE)}, 1
s_and_b32 {s(S_WC)}, {s(S_WAVE)}, 1
s_lshl_b32 {s(S_W4K)}, {s(S_WAVE)}, 12
s_mov_b32 {s(S_CH)}, {s(S_ROT)}
s_lshl_b32 {s(S_T0)}, {s(S_WR)}, 10
s_add_u32 {s(S_T0)}, {s(S_T0)}, 1024
s_cmp_eq_u32 {s(S_TYPE)}, 0
s_cselect_b32 {s(S_T0)}, {s(S_T0)}, {12*128}
s_movk_i32 {s(S_T1)}, 3584
s_cselect_b32 {s(S_T1)}, 3072, {s(S_T1)}
s_lshl_b32 {s(S_TX)}, {s(S_M)}, 7
s_add_u32 {s(S_T0)}, {s(S_T0)}, {s(S_TX)}
s_lshl_b32 {s(S_W3N)}, {s(S_T1)}, 6
s_lshl_b32 {s(S_T2)}, {s(S_T1)}, 3
s_sub_u32 {s(S_T2)}, {s(S_T2)}, 1024
s_lshl_b32 {s(R_W+2)}, {s(S_T1)}, 9
s_sub_u32 {s(R_W+2)}, {s(R_W+2)}, {s(S_T0)}""")
        e.emit(f"""v_lshrrev_b32 v2, 3, {v(LANE)}
v_lshl_add_u32 v2, {s(S_WAVE)}, 5, v2
v_lshlrev_b32 v2, 10, v2
v_lshrrev_b32 v3, 4, {v(LANE)}
v_and_b32 v4, 7, {v(LANE)}
v_xor_b32 v3, v3, v4
v_lshl_add_u32 {v(XV)}, v3, 4, v2
v_xor_b32 v5, 64, {v(XV)}
v_add_u32 {v(XV+1)}, {8192-1024}, v5
v_add_u32 {v(XV+2)}, {2*(8192-1024)}, {v(XV)}
v_add_u32 {v(XV+3)}, {3*(8192-1024)}, v5
v_lshlrev_b32 {v(L16)}, 4, {v(LANE)}""")
        e.emit(self.wv_full(s(S_T1), steps=s(S_T2)))
        x0 = self.dma_x(0)
        p0, w0 = self.dma_w(0, mul=s(S_W3N))
        e.emit(x0[:2] + p0)
        e.emit(f"""s_lshl_b32 {s(S_T2)}, {s(S_RB)}, 17
s_mov_b32 {s(R_X+2)}, 0x20000
s_mov_b32 {s(R_X+3)}, 0x20000
s_mov_b32 {s(R_W+3)}, 0x20000
s_add_u32 {s(R_X)}, {s(P_X)}, {s(S_T2)}
s_addc_u32 {s(R_X+1)}, {s(P_X+1)}, 0""")
        if cfg.mp == 1:
            e.emit(self.mall_pf(0))
        e.emit(x0[2:])
        e.emit(f"""s_cmp_eq_u32 {s(S_WR)}, 0
s_cselect_b64 {s(S_W3B,2)}, {s(P_WG,2)}, {s(P_WU,2)}
s_cmp_eq_u32 {s(S_TYPE)}, 0
s_cselect_b64 {s(R_W,2)}, {s(P_WQKV,2)}, {s(S_W3B,2)}
s_add_u32 {s(R_W)}, {s(R_W)}, {s(S_T0)}
s_addc_u32 {s(R_W+1)}, {s(R_W+1)}, 0""")
        e.emit(w0)
        e.emit(f"""v_lshl_add_u32 v1, {s(S_ROT)}, 7, {v(L16)}
v_and_b32 v1, 1023, v1
s_lshl1_add_u32 {s(S_TX)}, {s(S_M)}, {s(S_WR)}
v_lshl_add_u32 v2, {s(S_TX)}, 10, {v(L16)}
s_lshl_b32 {s(S_TW)}, {s(S_WR)}, 10
s_add_u32 {s(S_TW)}, {s(S_TW)}, {L_CP}
s_cmp_eq_u32 {s(S_WR)}, {s(S_WC)}
s_cselect_b64 vcc, -1, 0
s_cselect_b64 {s(P_BX,2)}, {s(P_GW,2)}, {s(P_WPHI,2)}
s_cselect_b32 m0, {L_CG}, {s(S_TW)}
v_cndmask_b32 v1, v2, v1, vcc""")
        cd = Ins(f"global_load_lds_dwordx4 v1, {s(P_BX,2)}")
        e.emit(cd)
        self.toks[0].append(cd)
        if cfg.mp == 2:
            e.emit(self.mall_pf(0))
        if cfg.mpb == 0:
            e.emit(self.mall_pf(1))
        for i in (1, 2):
            e.emit(f"s_add_u32 {s(S_CH+i)}, {s(S_ROT)}, {i}\ns_and_b32 {s(S_CH+i)}, {s(S_CH+i)}, 7")
        e.emit(f"""v_mov_b32 v6, 0
v_lshlrev_b32 v7, 2, v0
v_add_u32 v7, {L_CZ}, v7""")
        zw = Ins("ds_write_b32 v7, v6")
        e.emit(zw)
        B = ACCB + 1
        e.emit(f"""v_lshrrev_b32 {v(B)}, 5, {v(LANE)}
v_bfe_u32 {v(B+1)}, {v(LANE)}, 4, 1
v_bfe_u32 {v(B+2)}, {v(LANE)}, 2, 2
v_and_b32 {v(B+3)}, 3, {v(LANE)}
v_mov_b32 {v(B+5)}, v0
v_and_b32 v14, 31, {v(LANE)}
v_bfe_u32 v15, {v(LANE)}, 1, 3
v_xor_b32 v15, v15, {v(B)}
v_lshlrev_b32 v15, 4, v15
v_lshl_add_u32 v15, v14, 7, v15
s_add_u32 {s(S_TX)}, {s(S_W4K)}, {L_X}
v_add_u32 {v(XA)}, {s(S_TX)}, v15""")
        for ks in range(4):
            for rt in range(2):
                if ks or rt:
                    e.emit(f"v_xor_b32 {v(XA+ks*2+rt)}, {ks*32 + rt*4096}, {v(XA)}")
        e.emit(f"""v_lshlrev_b32 v16, 3, {v(B+3)}
v_lshl_add_u32 v16, {v(B+1)}, 5, v16
v_lshrrev_b32 v17, 1, {v(B+2)}
v_xor_b32 v17, {s(S_WC)}, v17
v_lshl_add_u32 {v(B+4)}, v17, 6, v16
v_lshl_add_u32 v18, {v(B)}, 3, {v(B+2)}
v_lshl_add_u32 {v(WA)}, v18, 7, {v(B+4)}
v_xor_b32 v19, {v(B+2)}, {v(B+1)}
v_and_b32 v19, 1, v19
v_lshlrev_b32 v19, 10, v19
v_lshl_add_u32 v19, {v(B)}, 4, v19
v_add_u32 {v(GAD)}, {L_CG}, v19""")
        e.emit(self.dma_x(1))
        p1, w1 = self.dma_w(1, mul=s(S_W3N))
        e.emit(p1 + w1)
        if cfg.mp == 3:
            e.emit(self.mall_pf(0))
        self.zw = zw
        e.emit(f"s_cmp_eq_u32 {s(S_TYPE)}, 1\ns_cbranch_scc1 L_typeQ")

    def setup_fill(self):
        typ = self.typ
        o = []
        A = lambda t: o.extend(I(t))
        GL = lambda t: o.extend(G(t))
        B = ACCB + 1
        hi, g1, r_, c_, col, tid = [v(B + i) for i in range(6)]
        t = [v(ACCB + 8 + i) for i in range(8)]
        msk = s(S_MSK, 2)
        for i in range(3, 8):
            A(f"s_add_u32 {s(S_CH+i)}, {s(S_ROT)}, {i}\ns_and_b32 {s(S_CH+i)}, {s(S_CH+i)}, 7")
        A(f"""s_mov_b64 {s(R_DBG,2)}, {s(P_DBG,2)}
s_movk_i32 {s(R_DBG+2)}, 256
s_mov_b32 {s(R_DBG+3)}, 0x20000
s_or_b32 {s(S_RT)}, {s(S_RT)}, 1
s_or_b32 {s(S_RT+1)}, {s(S_RT+1)}, 0x80000000
v_mov_b32 {t[0]}, {s(S_RT)}
v_mov_b32 {t[1]}, {s(S_RT+1)}
v_lshl_add_u32 {t[2]}, s2, 8, {tid}
v_lshlrev_b32 {t[2]}, 8, {t[2]}
buffer_store_dwordx2 {v(ACCB+8,2)}, {t[2]}, {s(R_DBG,4)}, 0 offen sc1
s_mov_b64 {s(R_WS,2)}, {s(P_WS,2)}
s_mov_b32 {s(R_WS+2)}, {WS_SIZE}
s_mov_b32 {s(R_WS+3)}, 0x20000
s_lshl_b32 {s(S_W8K)}, {s(S_WAVE)}, 13""")
        l2 = 0 if typ == "K" else 20
        A(f"s_lshl_b32 {s(S_T0)}, {s(S_M)}, 7\ns_add_u32 {s(S_T1)}, {s(S_T0)}, {l2*128}")
        GL(f"s_add_u32 {s(S_W2B)}, {s(S_W3B)}, {s(S_T1)}\ns_addc_u32 {s(S_W2B+1)}, {s(S_W3B+1)}, 0")
        A(f"s_sub_u32 {s(S_W2N)}, {512*3584}, {s(S_T1)}")
        if typ == "K":
            A(f"s_lshl_b32 {s(S_T1)}, {s(S_M)}, 6\ns_add_u32 {s(S_T1)}, {s(S_T1)}, {8*128}")
            GL(f"s_add_u32 {s(S_W3B)}, {s(S_W3B)}, {s(S_T1)}\ns_addc_u32 {s(S_W3B+1)}, {s(S_W3B+1)}, 0")
            A(f"s_sub_u32 {s(S_W3N)}, {512*3584}, {s(S_T1)}")
        else:
            GL(f"s_add_u32 {s(S_W3B)}, {s(P_WQKV)}, {s(S_T0)}\ns_addc_u32 {s(S_W3B+1)}, {s(P_WQKV+1)}, 0")
            A(f"s_sub_u32 {s(S_W3N)}, {512*3072}, {s(S_T0)}")
        GL(f"s_cmp_eq_u32 {s(S_WC if typ == 'K' else S_WR)}, 0\n" + "\n".join(f"s_cselect_b32 {s(S_CH3+i)}, {s(S_CH+2*i)}, {s(S_CH+2*i+1)}" for i in range(4)))
        A(f"""v_lshl_add_u32 {t[5]}, {hi}, 2, {r_}
v_lshrrev_b32 {t[3]}, 1, {c_}
v_lshl_add_u32 {t[3]}, {g1}, 1, {t[3]}
v_lshlrev_b32 {t[3]}, 3, {t[3]}
v_lshl_add_u32 {t[3]}, {t[5]}, 5, {t[3]}
v_lshl_add_u32 {t[3]}, {s(S_WC)}, 10, {t[3]}
v_add_u32 {t[3]}, {L_CP}, {t[3]}""")
        for en in range(2):
            for h in range(2):
                o.append(Ins(f"ds_read_b64_tr_b16 {v(PHI+en*4+h*2,2)}, {t[3]} offset:{en*512+h*256}"))
        A(f"""v_and_b32 {t[4]}, 1, {r_}
v_mul_u32_u24 {t[4]}, 0x8000, {t[4]}
v_lshl_or_b32 {t[4]}, {t[4]}, 16, {t[4]}""")
        A(f"""v_lshl_add_u32 {t[6]}, {t[5]}, 7, {col}
v_add_u32 {v(BA)}, {s(S_W8K)}, {t[6]}
v_xor_b32 {v(BA+1)}, 64, {v(BA)}
v_add_u32 {v(BA+2)}, 0x10000, {v(BA)}
v_add_u32 {v(BA+3)}, 0x10000, {v(BA+1)}
v_add_u32 {v(BA+4)}, 0x20000, {v(BA)}
v_add_u32 {v(BA+5)}, 0x20000, {v(BA+1)}
v_mov_b32 {v(VK1)}, {hex(f2u(K1))}
v_mov_b32 {v(VL2E)}, {hex(f2u(LOG2E))}
v_lshl_add_u32 {v(HV)}, {s(S_WC)}, 10, {v(L16)}
v_xor_b32 {v(HV+1)}, 1024, {v(HV)}
v_lshl_add_u32 {v(AV)}, {s(S_WR)}, 10, {v(L16)}
v_xor_b32 {v(AV+1)}, 1024, {v(AV)}
v_lshlrev_b32 {v(GXA)}, 2, {tid}
v_add_u32 {v(GXA)}, {L_GX}, {v(GXA)}""")
        o += [Ins(f"v_xor_b32 {v(PHI+i)}, {t[4]}, {v(PHI+i)}") for i in range(8)]
        A(f"""s_lshl4_add_u32 {s(S_T0)}, {s(S_RB)}, {s(S_M)}
s_lshl_b32 {s(S_T0)}, {s(S_T0)}, 7
s_add_u32 {s(S_T0)}, {s(S_T0)}, {WS_FL + (1024 if typ == 'Q' else 0)}
v_cmp_eq_u32 {msk}, 0, {tid}
v_mov_b32 {t[7]}, {OOB}
v_mov_b32 {t[6]}, {s(S_T0)}
v_cndmask_b32 {v(FLOFF)}, {t[7]}, {t[6]}, {msk}""")
        A(f"""s_lshl1_add_u32 {s(S_T0)}, {s(S_RB)}, {s(S_WR)}
s_mul_i32 {s(S_T0)}, {s(S_T0)}, {36*8192}
s_lshl1_add_u32 {s(S_T1)}, {s(S_M)}, {s(S_WC)}
s_lshl_b32 {s(S_T2)}, {s(S_T1)}, 12
s_add_u32 {s(S_H2)}, {s(S_T2)}, {s(S_T0)}""")
        if typ == "K":
            A(f"""s_lshl_b32 {s(S_T2)}, {s(S_T1)}, 11
s_add_u32 {s(S_T2)}, {s(S_T2)}, {s(S_T0)}
s_add_u32 {s(S_H3)}, {s(S_T2)}, {8*8192}""")
        else:
            A(f"""s_add_u32 {s(S_H1)}, {s(S_H2)}, {12*8192}
s_add_u32 {s(S_H3)}, {s(S_H2)}, {28*8192}
s_add_u32 {s(S_H2)}, {s(S_H2)}, {20*8192}""")
        A(f"""s_and_b32 {s(S_T0)}, s2, 7
s_lshr_b32 {s(S_T1)}, s2, 6
s_lshl2_add_u32 {s(S_T0)}, {s(S_T0)}, {s(S_T1)}
s_bfe_u32 {s(S_T2)}, s2, {3 | (3 << 16)}
{['s_mov_b32 %s, 0' % s(S_T1), 's_add_u32 %s, %s, %s' % (s(S_T1), s(S_T1), s(S_T2)), 's_mov_b32 %s, %s' % (s(S_T1), s(S_T2))][self.cfg.par]}
s_lshl1_add_u32 {s(S_LB)}, {s(S_WAVE)}, {s(S_T1)}
s_add_u32 {s(S_LB+1)}, {s(S_LB)}, 1
s_add_u32 {s(S_LB+2)}, {s(S_WAVE)}, {s(S_T1)}
s_and_b32 {s(S_LB+2)}, {s(S_LB+2)}, 3
v_and_b32 {t[6]}, 1, {v(LANE)}
v_add_u32 {v(POLL8)}, {s(S_LB)}, {t[6]}
v_and_b32 {v(POLL8)}, 7, {v(POLL8)}
v_lshlrev_b32 {v(POLL8)}, 7, {v(POLL8)}
v_lshl_add_u32 {v(POLL4)}, {s(S_LB+2)}, 1, {t[6]}
v_lshlrev_b32 {v(POLL4)}, 7, {v(POLL4)}
s_and_b32 {s(S_LB)}, {s(S_LB)}, 7
s_and_b32 {s(S_LB+1)}, {s(S_LB+1)}, 7
s_mul_i32 {s(S_T1)}, {s(S_T0)}, 36""")
        for i in range(3):
            A(f"s_add_u32 {s(S_LA+i)}, {s(S_LB+i)}, {s(S_T1)}\ns_lshl_b32 {s(S_LA+i)}, {s(S_LA+i)}, 13\ns_lshl_b32 {s(S_LB+i)}, {s(S_LB+i)}, 16")
        A(f"""s_lshr_b32 {s(S_PB)}, {s(S_T0)}, 1
s_lshl_b32 {s(S_PB)}, {s(S_PB)}, 11
s_add_u32 {s(S_PB)}, {s(S_PB)}, {WS_FL}
s_lshl_b32 {s(S_T2)}, {s(S_T2)}, 7""")
        GL(f"s_add_u32 {s(R_WD)}, {s(P_WD)}, {s(S_T2)}\ns_addc_u32 {s(R_WD+1)}, {s(P_WD+1)}, 0")
        A(f"s_sub_u32 {s(R_WD+2)}, {1792*1024}, {s(S_T2)}\ns_mov_b32 {s(R_WD+3)}, 0x20000")
        GL(f"s_add_u32 {s(R_WO)}, {s(P_WO)}, {s(S_T2)}\ns_addc_u32 {s(R_WO+1)}, {s(P_WO+1)}, 0")
        A(f"""s_sub_u32 {s(R_WO+2)}, {512*1024}, {s(S_T2)}
s_mov_b32 {s(R_WO+3)}, 0x20000
s_lshl_b32 {s(S_T0)}, {s(S_T0)}, 16
s_add_u32 {s(S_T0)}, {s(S_T0)}, {s(S_T2)}""")
        GL(f"s_add_u32 {s(R_OUT)}, {s(P_OUT)}, {s(S_T0)}\ns_addc_u32 {s(R_OUT+1)}, {s(P_OUT+1)}, 0")
        A(f"s_sub_u32 {s(R_OUT+2)}, {2048*1024}, {s(S_T0)}\ns_mov_b32 {s(R_OUT+3)}, 0x20000")
        if typ == "K":
            A(f"""v_lshl_add_u32 {t[6]}, {hi}, 3, {r_}
v_xor_b32 {t[3]}, {s(S_WC)}, {g1}
v_lshlrev_b32 {t[3]}, 5, {t[3]}
v_lshl_add_u32 {t[3]}, {c_}, 3, {t[3]}
v_lshl_add_u32 {t[3]}, {t[6]}, 6, {t[3]}
v_lshl_add_u32 {v(WA3)}, {g1}, 13, {t[3]}""")
            A(f"""s_lshl1_add_u32 {s(S_T0)}, {s(S_WC)}, {s(S_WR)}
s_mul_i32 {s(S_T0)}, {s(S_T0)}, {4*1040}
s_add_u32 {s(S_T0)}, {s(S_T0)}, {L_PV}
v_add_u32 {v(K_VW)}, {s(S_T0)}, {v(L16)}
v_mul_u32_u24 {t[3]}, 1040, {c_}
v_add_u32 {v(K_ONE)}, {s(S_T0)}, {t[3]}
v_cmp_eq_u32 {msk}, 0, {g1}
v_lshl_add_u32 {t[3]}, {s(S_WR)}, 8, {v(L16)}
v_mov_b32 {t[6]}, 1024
s_mul_i32 {s(S_T0)}, {s(S_WC)}, {8*1040}
s_add_u32 {s(S_T0)}, {s(S_T0)}, {L_PV}
v_cndmask_b32 {t[3]}, {t[6]}, {t[3]}, {msk}
v_add_u32 {v(K_VR)}, {s(S_T0)}, {t[3]}""")
            A(f"""v_lshlrev_b32 {t[3]}, 1, {hi}
v_bfe_u32 {t[6]}, {v(LANE)}, 1, 2
v_xor_b32 {t[3]}, {t[3]}, {t[6]}
v_lshlrev_b32 {t[3]}, 4, {t[3]}
v_and_b32 {t[6]}, 31, {v(LANE)}
v_lshl_add_u32 {t[3]}, {t[6]}, 6, {t[3]}
s_lshl2_add_u32 {s(S_T0)}, {s(S_WC)}, {s(S_WR)}
s_lshl_b32 {s(S_T0)}, {s(S_T0)}, 12
s_add_u32 {s(S_T0)}, {s(S_T0)}, {L_PK}
v_add_u32 {v(K_PW)}, {s(S_T0)}, {t[3]}
v_xor_b32 {v(K_PW+1)}, 16, {v(K_PW)}""")
            A(f"""v_and_b32 {t[3]}, 1, {v(LANE)}
v_lshl_add_u32 {t[3]}, {t[3]}, 1, {g1}
v_lshrrev_b32 {t[6]}, 1, {t[5]}
v_xor_b32 {t[3]}, {t[3]}, {t[6]}
v_lshlrev_b32 {t[3]}, 4, {t[3]}
v_lshl_add_u32 {t[3]}, {t[5]}, 6, {t[3]}
v_bfe_u32 {t[6]}, {v(LANE)}, 1, 1
v_lshl_add_u32 {t[3]}, {t[6]}, 3, {t[3]}
s_lshl1_add_u32 {s(S_T0)}, {s(S_WC)}, {s(S_WR)}
s_lshl_b32 {s(S_T0)}, {s(S_T0)}, 13
s_add_u32 {s(S_T0)}, {s(S_T0)}, {L_PK}
v_add_u32 {v(K_PR)}, {s(S_T0)}, {t[3]}
v_and_b32 {t[6]}, 15, {v(LANE)}
v_cmp_eq_u32 {msk}, 0, {t[6]}""")
            o += [Ins(f"v_mov_b32 {v(T+8+i)}, 0x3f803f80") for i in range(4)]
            A(f"v_cndmask_b32 {v(K_ZO)}, {t[7]}, {v(L16)}, {msk}")
        else:
            A(f"""v_lshlrev_b32 {t[3]}, 2, {hi}
v_and_b32 {t[6]}, 31, {v(LANE)}
v_sub_u32 {t[3]}, {t[6]}, {t[3]}
v_and_b32 {t[6]}, 1, {t[3]}
v_lshlrev_b32 {t[6]}, 4, {t[6]}
v_mov_b32 {t[7]}, 0x3f80
v_lshlrev_b32 {t[6]}, {t[6]}, {t[7]}
v_and_b32 {t[3]}, -2, {t[3]}""")
            for jj in range(4):
                A(f"v_cmp_eq_u32 {msk}, {(2*jj & 3) + 8*(jj >> 1)}, {t[3]}\nv_cndmask_b32 {v(Q_SEL+jj)}, 0, {t[6]}, {msk}")
            A(f"""v_and_b32 {v(Q_KP)}, 15, {v(LANE)}
v_lshlrev_b32 {v(Q_KP)}, 11, {v(Q_KP)}
s_add_u32 {s(S_T0)}, {s(S_W8K)}, {L_FX}
v_add_u32 {v(Q_FW)}, {s(S_T0)}, {v(L16)}
v_and_b32 {v(Q_FR)}, {hex(0xffffffff ^ 16384)}, {v(Q_FW)}""")
        return o

    def setup_fill2(self):
        o = self.bv_setup()
        o += I(f"""s_lshl1_add_u32 {s(S_T0)}, {s(S_M)}, {s(S_WC)}
s_lshl1_add_u32 {s(S_T0)}, {s(S_T0)}, {s(S_WR)}
s_mov_b32 {s(S_SLOW)}, 0""")
        if self.typ == "K":
            o += I(f"""s_lshl4_add_u32 {s(S_T1)}, {s(S_T0)}, {s(S_RB)}
s_lshl_b32 {s(S_T1)}, {s(S_T1)}, 10
s_add_u32 {s(S_KVX)}, {s(S_T1)}, {WS_KVX}
s_lshl_b32 {s(S_T0)}, {s(S_T0)}, 10
s_lshl4_add_u32 {s(S_T0)}, {s(S_RB)}, {s(S_T0)}
s_add_u32 {s(S_KVZ)}, {s(S_T0)}, {WS_KVZ}""")
        else:
            o += I(f"""s_lshl_b32 {s(S_T1)}, {s(S_T0)}, 14
s_add_u32 {s(S_KVX)}, {s(S_T1)}, {WS_KVX}
s_lshl_b32 {s(S_T0)}, {s(S_T0)}, 10
s_add_u32 {s(S_KVZ)}, {s(S_T0)}, {WS_KVZ}
s_lshl_b32 {s(S_T0)}, {s(S_M)}, 7
s_add_u32 {s(S_KVP)}, {s(S_T0)}, {WS_FL}""")
        return o

    def frag_reads(self, j):
        c, k = divmod(j, 8)
        gi, tile = divmod(k, 2)
        F = WF + (j % 4) * 4
        slot = L_W + (c % 4) * 16384
        o = []
        for h in range(2):
            if c < 16:
                ad, off = WA, slot + tile * 8192 + gi * 2048 + h * 512
            elif c < 20 and self.typ == "Q":
                ad, off = WA, slot + k * 2048 + h * 512
            elif c < 20:
                ad, off = WA3, slot + k * 1024 + h * 256
            else:
                q = self.BQ[c - 20]
                ad, off = BA + 2 * (q // 2) + tile, (q % 2) * 32768 + gi * 2048 + h * 1024
            o.append(Ins(f"ds_read_b64_tr_b16 {v(F+h*2,2)}, {v(ad)} offset:{off}"))
        return o

    def x_read(self, c, i):
        return Ins(f"ds_read_b128 {a_((c*8+i)*4,4)}, {v(XA+i)} offset:{(c%3)*16384}")

    def g_read(self, Gp):
        return Ins(f"ds_read_b128 {v(GF+(Gp&1)*4,4)}, {v(GAD)} offset:{Gp*32}")

    def main_mfma(self, j, rt):
        c, k = divmod(j, 8)
        gi, tile = divmod(k, 2)
        W = v(WF + (j % 4) * 4, 4)
        if c < 16:
            xs = (c % 8) * 4 + gi
            acc = v((ACCA if c < 8 else ACCB) + tile * 32 + rt * 16, 16)
            first = xs == 0
            X = a_((xs * 2 + rt) * 4, 4)
        elif c < 20:
            xs = (c - 16) * 8 + k
            acc = v(ACCA + rt * 16, 16)
            first = xs == 0
            X = a_((xs * 2 + rt) * 4, 4)
        else:
            q = tile + 2 * rt
            acc = v(ACC0, 16) if q == 0 else a_(64 + (q - 1) * 16, 16)
            first = c == 20 and gi == 0
            X = a_(A_REG[c - 20] + (gi * 2 + rt) * 4, 4)
        A_, B_ = (X, W) if (self.typ == "K" and c < 8 and tile == 1) else (W, X)
        return Ins(f"v_mfma_f32_32x32x16_bf16 {acc}, {A_}, {B_}, {'0' if first else acc}")

    def body(self, typ, e, toks0):
        cfg = self.cfg
        self.typ = typ
        self.toks = {c: list(toks0.get(c, [])) for c in range(20)}
        self.btok = {b: [] for b in range(9)}
        self.atok = {(b, ks): [] for b in range(9) for ks in range(4)}
        NF = 29 * 8
        fr = [self.frag_reads(j) for j in range(NF)]
        xr = {(c, i): self.x_read(c, i) for c in range(8) for i in range(8)}
        gr_ = [self.g_read(g) for g in range(32)]
        head = self.stamp("p0") + [Wait(vm=self.toks[0], lds=[self.zw]), Ins("s_barrier")] + self.stamp("p1")
        head += fr[0] + [xr[(0, 0)], xr[(0, 1)]] + fr[1] + [gr_[0]] + fr[2] + [xr[(0, i)] for i in range(2, 6)]

        sc = Sched(self.log)
        gap = {}
        for j in range(NF):
            c, k = divmod(j, 8)
            for rt in range(2):
                n = 2 * k + rt
                sc.label(f"{c}.{n}")
                mm = self.main_mfma(j, rt)
                mm.expect = Cat(fr[j], self.atok[(c - 20, k // 2)] if c >= 20 else list(xr.values()))
                g = sc.mfma(mm)
                gap[(c, n)] = g
                if rt == 1 and j + 1 < NF:
                    c1, k1 = divmod(j + 1, 8)
                    lds = list(fr[j + 1]); vm = []
                    if k1 % 2 == 0:
                        if c1 < 8:
                            lds += [xr[(c1, k1)], xr[(c1, k1 + 1)]]
                        if c1 >= 20:
                            vm = self.atok[(c1 - 20, k1 // 2)]
                    elif c1 < 8:
                        lds.append(gr_[c1 * 4 + k1 // 2])
                    g.pre.append(Wait(vm=vm, lds=lds))
                if j + 3 < NF:
                    g.mem.append(fr[j + 3][rt])
                if n >= 10 and c + 1 < 8:
                    g.mem.append(xr[(c + 1, n - 10)])
                if n < 2 and c < 8:
                    g.mem.append(xr[(c, 6 + n)])
                if n % 4 == 2 and c < 8 and c * 4 + n // 4 + 1 < 32:
                    g.mem.append(gr_[c * 4 + n // 4 + 1])
                if n % 4 == 3 and c < 8:
                    Gp = c * 4 + n // 4
                    sc.mfma(Ins(f"v_mfma_f32_16x16x32_bf16 {v(GA,4)}, {v(GF+(Gp&1)*4,4)}, {a_(Gp*8,4)}, {'0' if Gp == 0 else v(GA,4)}"))
        sc.label("end")
        sc.finish()

        bar = {}
        w22 = gap[(21, 15)].pre.pop(0)
        w27 = gap[(26, 15)].pre.pop(0)

        def barrier(at, vm=(), lds=(), post=(), name=None):
            g = gap[at]
            bar[name] = Ins("s_barrier")
            g.pre += self.stamp("w" + name, 2) + [Wait(vm=vm, lds=lds), bar[name]] + list(post) + self.stamp("b" + name, 2)
        bvm = {c: [] for c in range(1, 20)}; blds = {c: [] for c in range(1, 20)}; bpost = {c: [] for c in range(1, 20)}
        for c in (8, 16, 20, 22, 27):
            gap[(c, 0)].head += self.stamp(f"s{c}")

        P = sc.place
        L = lambda c, n: f"{c}.{n}"
        nld = Ins(f"buffer_load_dwordx2 {v(NONCE,2)}, off, {s(R_DBG,4)}, 0 sc1")
        ncheck = self.slow_path(nld, f"v_min_u32 {v(PF)}, {v(NONCE)}, {v(NONCE+1)}\n  v_cmp_eq_u32 vcc, 0, {v(PF)}", 0)
        gw = Ins(f"ds_write_b32 {v(GXA)}, {v(GA)}")
        gx = self.gate_consts(GA, 0) + [gw] + I(f"v_xor_b32 {v(GXA)}, 256, {v(GXA)}")
        blds[9].append(gw)
        grd = [Ins(f"ds_read_b32 {v(GA+1)}, {v(GXA)}")] + self.gate_consts(GA + 1, 1)
        o2, st2 = self.gu_full(ACCB, S_H2)
        if typ == "Q":
            o0, s0 = self.gu_full(ACCA, S_H1, rts=(0,))
            o1, s1 = self.gu_full(ACCA, S_H1, rts=(1,))
            bvm[15] += s0 + s1
            bpost[15].append(self.flag_store(0))
        else:
            fk = self.qk_cvt() + [self.p_mfma(0)]
            wts = []
            w_ = Ins(f"ds_write_b128 {v(K_ONE)}, {v(T+8,4)} offset:1024")
            fk.append(w_); wts.append(w_)
            vw = []
            for i in range(4):
                b0 = ACCA + 32 + i * 8
                d0 = T + (i & 1) * 4
                x = [Ins(f"v_cvt_pk_bf16_f32 {v(d0+q)}, {v(b0+2*q)}, {v(b0+2*q+1)}") for q in range(4)]
                w_ = Ins(f"ds_write_b128 {v(K_VW)}, {v(d0,4)} offset:{i*1040}")
                vw.append(x + [w_]); wts.append(w_)
            fk += vw[0] + vw[1] + [self.p_mfma(1)] + vw[2] + vw[3]
            for u in range(4):
                rt, en = divmod(u, 2)
                fk += self.softmax(ACCA + (u & 1) * 16, K_D, T + 12)
                if u + 2 < 4:
                    fk.append(self.p_mfma(u + 2))
                for q in range(2):
                    w_ = Ins(f"ds_write_b128 {v(K_PW+q)}, {v(K_D+q*4,4)} offset:{en*8192+rt*2048}")
                    fk.append(w_); wts.append(w_)
            KV = ACCA + 32
            fv = []

            def kvr(u):
                b0 = ACCA + (u & 3) * 8
                return [Ins(f"ds_read_b64_tr_b16 {v(b0,2)}, {v(K_PR)} offset:{u*1024}"),
                        Ins(f"ds_read_b64_tr_b16 {v(b0+2,2)}, {v(K_PR)} offset:{u*1024+512}"),
                        Ins(f"ds_read_b128 {v(b0+4,4)}, {v(K_VR)} offset:{u*1040}")]
            for u in range(4):
                fv += kvr(u)
            for u in range(8):
                b0 = ACCA + (u & 3) * 8
                fv.append(Ins(f"v_mfma_f32_32x32x16_bf16 {v(KV,16)}, {v(b0,4)}, {v(b0+4,4)}, {'0' if u == 0 else v(KV,16)}"))
                if u + 4 < 8:
                    fv += kvr(u + 4)
            fv += [Ins(f"v_cvt_pk_bf16_f32 {v(K_D+i)}, {v(KV+2*i)}, {v(KV+2*i+1)}") for i in range(8)]
            fv += [Ins(f"v_permlane16_swap_b32 {v(K_D+i)}, {v(K_D+4+i)}") for i in range(4)]
            sx = Ins(f"buffer_store_dwordx4 {v(K_D,4)}, {v(L16)}, {s(R_WS,4)}, {s(S_KVX)} offen sc1")
            sz = Ins(f"buffer_store_dwordx4 {v(K_D+4,4)}, {v(K_ZO)}, {s(R_WS,4)}, {s(S_KVZ)} offen sc1")
            fv += [sx, sz]
            KB = 13
            blds[KB] += wts
            bvm[KB + 3] += [sx, sz]
            bpost[KB + 3].append(self.flag_store(0))

        vs = {b: [] for b in range(0, 20)}
        early = {}
        for c in range(2, 20):
            p, d = self.dma_w(c)
            if c < 8:
                vs[c - 2] += self.dma_x(c) + p + d
            else:
                vs[c - 3] += p
                vs[c - 2] = d + vs[c - 2]
        for c in range(1, 20):
            barrier((c - 1, 10), vm=self.toks[c] + bvm[c], lds=blds[c], post=bpost[c], name=str(c))
        barrier((19, 14), name="20")
        for b in range(9):
            gap[(19 + b, 10)].pre.append(Wait(vm=self.btok[b]))
        vs[4].append(nld)
        if 0 < cfg.mpb < 20:
            vs[cfg.mpb] += self.mall_pf(1)
        if typ == "Q":
            bp = {8: (0, 0), 9: (0, 1), 10: (1, 0), 11: (1, 1), 12: (2, 0), 13: (2, 1)}
        else:
            bp = {10: (0, 0), 12: (0, 1), 15: (1, 0), 16: (1, 1), 17: (2, 0), 18: (2, 1)}
        for b, (blk, h) in bp.items():
            vs[b] += self.dma_b(blk, (h,))
        pe1 = self.poll_blk(0)
        vs[17].append(pe1)
        for b in range(0, 18):
            P(vs[b], L(b - 1, 10) if b else L(0, 0), L(b, 10), space=(1 if b == 0 else 2) if b < 6 else 1, name=f"vm{b}")
        P(vs[18] + [Hold(L(18, 2))] + self.poll_check(pe1, 1) + self.load_a(0), L(17, 10), L(18, 12), name="vm18")
        tail = self.load_a(1) + self.dma_b(3)
        if typ == "Q":
            pkv = self.poll_issue(Q_KP, S_KVP, 0)
            tail.append(pkv)
        P(tail, L(18, 12), L(19, 14), name="vm19")

        P(self.setup_fill(), L(0, 0), L(4, 8), name="setup")
        P(self.setup_fill2() + [Hold(L(7, 0))] + ncheck, L(5, 10), L(7, 8), name="setup2")
        P(gx, L(8, 1), L(8, 10), name="gx")
        P(grd, L(8, 10), L(9, 10), name="grd")
        if typ == "Q":
            P(o0 + [Hold(L(9, 10))] + o1, L(8, 4), L(13, 6), name="gu1")
        else:
            P(fk, L(8, 1), L(KB - 1, 10), over=cfg.kover, name="ksm")
            P(fv, L(KB - 1, 10), L(KB + 1, 10), name="kv")
        P(o2, L(16, 1), L(20, 0), name="gu2")

        pe2 = self.poll_blk(2); pe4 = self.poll_blk(4); pe6 = self.poll_blk(6); pe7 = self.poll_blk(7)
        brk = gap[(22, 0)].head
        if typ == "K":
            barrier((21, 2), vm=st2, post=[self.flag_store(1)], name="f1")
            P(self.dma_b(4) + [Hold(L(20, 14))] + self.dma_b(5) + [Hold(L(21, 10)), pe2], L(19, 14), L(21, 14), name="vm20")
            o3, st3 = [], []
            for rt in range(2):
                x, st = self.gu_frag(ACCA + rt * 16, ACCA + rt * 16 + 8, rt, S_H3, 0, T + 8 + 4 * rt)
                o3 += x; st3.append(st)
            P(o3, L(20, 1), L(21, 8), name="gu3")
            brk += self.dma_b(6) + self.poll_check(pe2, 2) + self.load_a(2) + [Wait(vm=st3), Ins("s_barrier"), self.flag_store(2)]
            brk += self.load_a(3) + [pe4]
            v22 = [Hold(L(22, 4))] + self.poll_check(pe4, 3) + self.load_a(4) + self.load_a(5) + [pe6, Hold(L(22, 14))] + self.dma_b(7)
        else:
            barrier((20, 14), vm=st2, post=[self.flag_store(1)], name="f1")
            xl = [Ins(f"buffer_load_dwordx4 {v(Q_ZR,4)}, {v(L16)}, {s(R_WS,4)}, {s(S_KVZ)} offen sc1")]
            for p in range(16):
                if p and p % 4 == 0:
                    xl += I(f"s_add_u32 {s(S_KVX)}, {s(S_KVX)}, 4096")
                xl.append(Ins(f"buffer_load_dwordx4 {a_(A_KVX+4*p,4)}, {v(L16)}, {s(R_WS,4)}, {s(S_KVX)} offen offset:{(p&3)*1024} sc1"))
            P(self.dma_b(4, (0,)) + [Hold(L(20, 3))] + self.poll_check(pkv, 5) + xl + self.dma_b(4, (1,)) + [Hold(L(20, 14))] + self.dma_b(5), L(19, 14), L(21, 15), over=8, space=0, name="vm20")
            PQ = ACCB
            fq = self.qk_cvt() + [self.p_mfma(0), self.p_mfma(1)]
            for u in range(4):
                fq += self.softmax(ACCA + (u & 1) * 16, PQ + 8 * u, T + 12)
                if u + 2 < 4:
                    fq.append(self.p_mfma(u + 2))
            P(fq, L(20, 1), L(22, 0), name="qsm")
            XS = ACCA + 32
            A = lambda t: brk.extend(I(t))
            brk += self.stamp("qs") + [pe2]
            for p in range(16):
                A(f"v_mfma_f32_32x32x16_bf16 {v(XS,16)}, {v(Q_SEL,4)}, {a_(A_KVX+4*p,4)}, {'0' if p == 0 else v(XS,16)}")
                if p < 2:
                    for i in (2 * p, 2 * p + 1):
                        A(f"v_lshlrev_b32 {v(Q_Z+2*i)}, 16, {v(Q_ZR+i)}\nv_and_b32 {v(Q_Z+2*i+1)}, 0xffff0000, {v(Q_ZR+i)}")
                elif p < 10:
                    sh = (8, 4, 2, 1)[(p - 2) // 2]
                    for i in range(4):
                        r = Q_Z + (p & 1) * 4 + i
                        A(f"v_add_f32 {v(r)}, {v(r)}, {v(r)} row_ror:{sh} row_mask:0xf bank_mask:0xf")
                elif p == 10:
                    for i in range(4):
                        A(f"v_cvt_pk_bf16_f32 {v(Q_F+4+i)}, {v(Q_Z+2*i)}, {v(Q_Z+2*i+1)}")
            for i in range(4):
                A(f"v_cvt_pk_bf16_f32 {v(Q_F+i)}, {v(XS+2*i)}, {v(XS+2*i+1)}")
            for i in range(4):
                A(f"v_permlane16_swap_b32 {v(Q_F+i)}, {v(Q_F+4+i)}")
            w0 = Ins(f"ds_write_b128 {v(Q_FW)}, {v(Q_F,4)}")
            w1 = Ins(f"ds_write_b128 {v(Q_FW)}, {v(Q_F+4,4)} offset:1024")
            brk += [w0, w1] + self.poll_check(pe2, 2) + [Wait(lds=[w0, w1]), Ins("s_barrier")]
            FF = ACCB + 32
            for i in range(4):
                A(f"ds_read_b128 {v(FF+4*i,4)}, {v(Q_FR)} offset:{(i>>1)*16384 + (i&1)*1024}")
            la = self.load_a(2) + self.load_a(3)
            brk += la[:5]; la = la[5:]
            OA = [ACCA, ACCA + 16, ACCA + 32, ACCB + 48]
            for u in range(4):
                for t in range(2):
                    A(f"v_mfma_f32_32x32x16_bf16 {v(OA[u],16)}, {v(FF+((u&1)*2+t)*4,4)}, {v(PQ+u*8+t*4,4)}, {'0' if t == 0 else v(OA[u],16)}")
                    k = 2 if la and la[0].kind == "salu" else 1
                    brk += la[:k]; la = la[k:]
            sto = []
            for u in range(4):
                rt, en = divmod(u, 2)
                O = OA[u]
                d0 = T + 4 * u
                A(f"""v_add_f32 {v(O+8)}, {hex(f2u(1e-6))}, {v(O+8)}
v_rcp_f32 {v(O+8)}, {v(O+8)}
v_mul_f32 {v(O+8)}, {v(O+8)}, {v(GG+rt)}""")
                for i in range(4):
                    A(f"v_pk_mul_f32 {v(O+2*i,2)}, {v(O+2*i,2)}, {v(O+8,2)} op_sel_hi:[1,0]")
                for i in range(4):
                    A(f"v_cvt_pk_bf16_f32 {v(d0+i)}, {v(O+2*i)}, {v(O+2*i+1)}")
                st = Ins(f"buffer_store_dwordx4 {v(d0,4)}, {v(HV+rt)}, {s(R_WS,4)}, {s(S_H3)} offen offset:{en*2048} sc1")
                brk.append(st); sto.append(st)
            brk += self.stamp("qo") + la + [pe4]
            barrier((23, 0), vm=sto, post=[self.flag_store(2)], name="f2")
            v22 = [Hold(L(22, 4))] + self.poll_check(pe4, 3) + self.load_a(4) + self.load_a(5) + [pe6, Hold(L(23, 0))] + self.dma_b(6)
        brk += [w22] + self.stamp("r22")
        P(v22, L(22, 0), L(24, 2), name="vm22")
        v24 = self.poll_check(pe6, 4) + self.load_a(6) + (self.dma_b(7) if typ == "Q" else []) + self.dma_b(8)
        P(v24, L(24, 2), L(26, 0), name="vm24")
        P([pe7], L(26, 0), L(26, 4), name="vm26")
        brk2 = gap[(27, 0)].head
        brk2 += self.poll_check(pe7, 6) + self.load_a(7) + self.load_a(8) + [w27] + self.stamp("r27")
        fin = I(f"""v_add_u32 {v(T)}, {s(S_W8K)}, {v(L16)}
v_xor_b32 {v(T+1)}, {1*8192}, {v(T)}
v_xor_b32 {v(T+2)}, {2*8192}, {v(T)}
v_xor_b32 {v(T+3)}, {3*8192}, {v(T)}
v_and_b32 {v(T+4)}, 31, {v(LANE)}
v_lshl_add_u32 {v(T+4)}, {s(S_WR)}, 5, {v(T+4)}
v_lshlrev_b32 {v(T+4)}, 10, {v(T+4)}
v_lshrrev_b32 {v(T+5)}, 5, {v(LANE)}
v_lshl_add_u32 {v(T+4)}, {v(T+5)}, 4, {v(T+4)}
v_lshl_add_u32 {v(T+4)}, {s(S_WC)}, 6, {v(T+4)}""")
        P(fin, L(27, 0), L(28, 0), name="fin")
        for c in range(2, 20):
            for d in self.toks[c]:
                d.after = [bar[str(c - 2)]] if c > 2 else []
        first = {0: [], 1: [bar["9" if typ == "Q" else str(KB + 2)]], 2: [bar["10" if typ == "Q" else str(KB + 2)]], 3: [bar["19"]], 4: [bar["20"]]}
        for b in range(9):
            for d in self.btok[b]:
                d.after = first[b] if b < 5 else [x for j in range(8) for x in fr[(20 + b - 5) * 8 + j]]
                if b == 6 and typ == "Q":
                    d.after = d.after + [bar["f2"]]
        self.log.append(f"  est {typ}: st1 {sc.est('0.0','8.0'):.0f} st2 {sc.est('8.0','16.0'):.0f} st3 {sc.est('16.0','20.0'):.0f} b01 {sc.est('20.0','21.15'):.0f} rest {sc.est('22.0','end'):.0f}")
        e.emit(self.expand_stamps(head + sc.items() + self.stamp("m")))
        self.final(e)

    def final(self, e):
        offs = {1: 32768, 2: 32768 + 4096, 3: 0}
        ws_ = []
        for q in (2, 1, 3):
            for i in range(4):
                w_ = Ins(f"ds_write_b128 {v(T)}, {a_(64+(q-1)*16+4*i,4)} offset:{offs[q]+i*1024}")
                e.emit(w_); ws_.append(w_)
        e.emit([Wait(lds=ws_), Ins("s_barrier")])
        R = ACCB
        for i in range(4):
            for q in range(1, 4):
                e.emit(f"ds_read_b128 {v(R+(q-1)*16+4*i,4)}, {v(T+q)} offset:{offs[q]+i*1024}")
        D = T + 8
        for i in range(4):
            for j in (0, 2):
                r = 4 * i + j
                e.emit(f"v_pk_add_f32 {v(ACC0+r,2)}, {v(ACC0+r,2)}, {v(R+r,2)}")
            for j in (0, 2):
                r = 4 * i + j
                e.emit(f"v_pk_add_f32 {v(R+16+r,2)}, {v(R+16+r,2)}, {v(R+32+r,2)}")
            for j in (0, 2):
                r = 4 * i + j
                e.emit(f"v_pk_add_f32 {v(ACC0+r,2)}, {v(ACC0+r,2)}, {v(R+16+r,2)}")
            e.emit(f"v_cvt_pk_bf16_f32 {v(D+2*i)}, {v(ACC0+4*i)}, {v(ACC0+4*i+1)}\nv_cvt_pk_bf16_f32 {v(D+2*i+1)}, {v(ACC0+4*i+2)}, {v(ACC0+4*i+3)}")
            if i & 1:
                b0 = D + 2 * (i - 1)
                e.emit(f"v_permlane32_swap_b32 {v(b0)}, {v(b0+2)}\nv_permlane32_swap_b32 {v(b0+1)}, {v(b0+3)}")
                e.emit(f"buffer_store_dwordx4 {v(b0,4)}, {v(T+4)}, {s(R_OUT,4)}, 0 offen offset:{(i>>1)*32} {self.cfg.out_flags}")
        typ = self.typ
        if self.cfg.prof:
            e.emit(self.expand_stamps(self.stamp("st") + [Ins("s_waitcnt vmcnt(0)")] + self.stamp("end")))
            e.emit(f"s_memrealtime s[22:23]\ns_waitcnt lgkmcnt(0)")
            n = len(self.stamps)
            assert n <= 60, n
            for k in range(max(0, n - 2), n):
                e.emit(f"v_writelane_b32 {v(self.streg)}, {s(STP[k%2])}, {k}")
            e.emit(f"v_subrev_u32 {v(self.streg)}, {s(S_ST0)}, {v(self.streg)}")
            e.emit(f"v_writelane_b32 {v(self.streg)}, {s(S_SLOW)}, 60\nv_writelane_b32 {v(self.streg)}, {s(S_RT)}, 61\nv_writelane_b32 {v(self.streg)}, s22, 62\nv_writelane_b32 {v(self.streg)}, {s(S_TYPE)}, 63")
            e.emit(f"""s_lshl2_add_u32 {s(S_T0)}, s2, {s(S_WAVE)}
s_lshl_b32 {s(S_T0)}, {s(S_T0)}, 8
s_add_u32 {s(S_T0)}, {s(S_T0)}, {WS_PROF}
v_lshlrev_b32 v16, 2, {v(LANE)}
buffer_store_dword {v(self.streg)}, v16, {s(R_WS,4)}, {s(S_T0)} offen""")
            self.names[typ] = list(self.stamps)
        if self.cfg.padto:
            e.emit(f"v_readfirstlane_b32 {s(S_T0)}, {v(NONCE)}")
            if self.cfg.chan:
                e.emit(f"""s_waitcnt lgkmcnt(0)
s_sub_u32 {s(S_T1)}, {s(S_ST0)}, {s(S_RT)}
s_max_i32 {s(S_T1)}, {s(S_T1)}, 0
s_min_i32 {s(S_T1)}, {s(S_T1)}, 5000
s_lshl_b32 {s(S_T1)}, {s(S_T1)}, 3
s_add_u32 {s(S_T0)}, {s(S_T0)}, {s(S_T1)}""")
            e.emit(f"""L_pad{typ}:
s_memrealtime s[4:5]
s_waitcnt lgkmcnt(0)
s_sub_u32 {s(S_T1)}, s4, {s(S_T0)}
s_cmp_lt_i32 {s(S_T1)}, {self.cfg.padto}
s_cbranch_scc1 L_pad{typ}""")
        e.emit("s_endpgm")

    def build(self):
        e0 = Emitter()
        self.prologue(e0)
        toks0 = self.toks
        txt = e0.text()
        for typ in ("K", "Q"):
            e = e0.fork()
            self.stamps = []
            self.streg = GG if typ == "K" else WA3
            if typ == "Q":
                e.emit("L_typeQ:")
            self.body(typ, e, toks0)
            self.log.append(f"type {typ}: {e.stats}")
            txt += e.text()
        txt += "\n".join(self.slow) + "\nL_end:\n"
        kn = NAME + "_kernel"
        nm = "".join(f"; stamps {t} {' '.join(n)}\n" for t, n in self.names.items())
        return nm + f"""; fused hedgehog linear attention + GEGLU gated mix (generated by work/gen2.py)
; @launch grid=(256,1,1) block=(256,1,1) lds={LDS_BYTES}
.amdgcn_target "amdgcn-amd-amdhsa--gfx950"
.text
.globl {kn}
.p2align 12
.type {kn},@function
{kn}:
{txt}  s_endpgm
.section .rodata,"a"
.p2align 6
.amdhsa_kernel {kn}
  .amdhsa_next_free_vgpr 512
  .amdhsa_next_free_sgpr 102
  .amdhsa_accum_offset 256
  .amdhsa_group_segment_fixed_size 0
  .amdhsa_kernarg_size 96
  .amdhsa_user_sgpr_count 2
  .amdhsa_user_sgpr_kernarg_segment_ptr 1
  .amdhsa_system_sgpr_workgroup_id_x 1
.end_amdhsa_kernel
"""


class Cat:
    def __init__(self, *l):
        self.l = l
    def __iter__(self):
        for x in self.l:
            yield from x


class Stamp:
    kind = "pseudo"; cost = 0; glue = False
    def __init__(self, name):
        self.name = name


if __name__ == "__main__":
    cfg = Cfg()
    out = sys.argv[1]
    for kv in sys.argv[2:]:
        k, val = kv.split("=")
        cur = getattr(cfg, k)
        setattr(cfg, k, val.replace("+", " ") if isinstance(cur, str) else int(val))
    DROP = {"st": r"buffer_store_dwordx4.*s\[36:39\]", "b": r"s\[4[04]:4[37]\].*lds", "a": r"buffer_load_dwordx4 a.*sc1",
            "mem": r"^buffer_(load|store)_dwordx4|s_cbranch_vccnz|buffer_load_dwordx2 v\[178",
            "poll": r"s_cbranch_vccnz|buffer_load_dwordx2 v\[178",
            "br": r"s_cbranch_vccnz",
            "valu": r"^v_(mul_f32|fma|exp|rcp|cvt|max|add_f32)",
            "comp": r"^v_(mul_f32|fma|exp|rcp|cvt|max|add_f32|mfma|pk_|perm)|^ds_",
            "bar": r"s_barrier"}
    Emitter.drop = "|".join(DROP[k] for k in cfg.drop.split(",") if k) or None
    g = Gen(cfg)
    open(out, "w").write(g.build())
    print("\n".join(g.log))
```
